```python
import torch

def _softmax(x, axis=-1):
    return torch.softmax(x, dim=axis)
def _gelu(x):
    return torch.nn.functional.gelu(x, approximate="tanh")
def _silu(x):
    return torch.nn.functional.silu(x)
def _sigmoid(x):
    return torch.sigmoid(x)
def _layernorm(x, axis=-1, eps=1e-5):
    m = x.mean(dim=axis, keepdim=True)
    v = x.var(dim=axis, keepdim=True, unbiased=False)
    return (x - m) / torch.sqrt(v + eps)
def _scatter_add(tgt, idx, src, axis=0):
    return tgt.clone().index_add_(axis, idx, src)
def _segment_sum(src, seg, n):
    out = torch.zeros((n,) + src.shape[1:], dtype=src.dtype)
    return out.index_add_(0, seg, src)
def _pad(x, pw):
    flat = tuple(v for pair in reversed(pw) for v in pair)
    return torch.nn.functional.pad(x, flat)

kernel_name = 'standalone__paged_block_table_kv_radixattention__decode'

def setup_inputs():

    _w = (lambda a: (lambda t: t.to(torch.bfloat16) if t.is_floating_point() else t)(torch.as_tensor(a)))
    B, H, Hkv, Dh = 2, 32, 8, 128
    Lk = 32768
    bs = 16
    nb = max(2, Lk // bs)
    P = max(1, nb // 2)
    n_phys = P + B * (nb - P)
    shared = torch.arange(P, dtype=torch.int64)
    priv = P + torch.arange(B * (nb - P), dtype=torch.int64).reshape(B, nb - P)
    bt = torch.cat([torch.tile(shared[None, :], (B, 1)), priv], dim=1)
    ctx = nb * bs - (torch.arange(1, B + 1, dtype=torch.int64) * 2654435761) % max(1, (nb * bs - P * bs) // 2)
    return {
        "q": _w((lambda *s: torch.randn(*s, dtype=torch.bfloat16) * 0.8)(B, H, Dh)),
        "k_cache": _w((lambda *s: torch.randn(*s, dtype=torch.bfloat16) * 0.8)(n_phys, bs, Hkv, Dh)),
        "v_cache": _w((lambda *s: torch.randn(*s, dtype=torch.bfloat16) * 0.05)(n_phys, bs, Hkv, Dh)),
        "block_table": _w(bt.to(torch.int64)),
        "ctx_lens": _w(torch.as_tensor(ctx).to(torch.int64)),
    }

def reference(q, k_cache, v_cache, block_table, ctx_lens):
    B, H, Dh = q.shape
    n_phys, bs, Hkv, _ = k_cache.shape
    nb = block_table.shape[1]
    Lk = nb * bs
    rep = H // Hkv
    k = k_cache[block_table].reshape(B, Lk, Hkv, Dh)
    v = v_cache[block_table].reshape(B, Lk, Hkv, Dh)
    k = (lambda x, n, axis: torch.repeat_interleave(x, n, dim=axis))(k, rep, axis=2)
    v = (lambda x, n, axis: torch.repeat_interleave(x, n, dim=axis))(v, rep, axis=2)
    scores = torch.einsum("bhd,bkhd->bhk", q, k) * (Dh ** -0.5)
    pos = torch.arange(Lk)
    valid = pos[None, :] < ctx_lens[:, None]
    scores = torch.where(valid[:, None, :], scores, -1e9)
    p = _softmax(scores, axis=-1)
    return torch.einsum("bhk,bkhd->bhd", p, v)
```

```python
import sys, argparse

NAME = "standalone__paged_block_table_kv_radixattention__decode"
KV_BYTES = 3072 * 32768
SCALE = (128 ** -0.5) * 1.4426950408889634
import struct
def f2u(x): return struct.unpack("<I", struct.pack("<f", x))[0]

class Asm:
    def __init__(self): self.l = []
    def __call__(self, s): self.l.append("    " + s)
    def label(self, s): self.l.append(s + ":")
    def raw(self, s): self.l.append(s)
    def text(self): return "\n".join(self.l) + "\n"

def vr(a, n): return f"v[{a}:{a+n-1}]"
def sr(a, n): return f"s[{a}:{a+n-1}]"

def gen(opt):
    R = opt.ring
    A = Asm()
    hint = opt.hint
    header = f"""; Paged-KV (block table, shared radix prefix) GQA decode attention, split-KV + combine.
; @launch kernel={NAME}_kernel grid=(256,1,1) block=(512,1,1) lds=34304
; @launch kernel=attn_combine_kernel grid=(128,1,1) block=(64,1,1) lds=0
.amdgcn_target "amdgcn-amd-amdhsa--gfx950"
.text
.globl {NAME}_kernel
.p2align 8
.type {NAME}_kernel,@function
{NAME}_kernel:"""
    A.raw(header)
    sK, sV, sQ, sBT, sWS = 24, 28, 32, 36, 40
    sCTX0, sCTX1 = 44, 45
    sH, sS, sWAVE, sWV, sMASK, sLANE, sDESC, sOFF = 46, 47, 48, 49, 50, 51, 52, 53
    sN = [54, 55, 56, 57, 62, 63]
    sT, sC, sNN, sOFF2 = 58, 59, 60, 61
    sZ0, sZ1 = 64, 65
    sT2 = 66
    sSIZE = 67
    vK, vV, vM0, vM1, vTOK, vDESC = 1, 2, 3, 4, 5, 6
    Q = [16, 32]
    O = [48, 56]
    M = [64, 66]; L = [65, 67]
    S = 68
    B = [72, 80]
    T = 88
    RK = [96 + 32 * r for r in range(R)]
    RV = [112 + 32 * r for r in range(R)]
    NV = 96 + 32 * R

    A("s_cmp_ge_u32 s2, 256")
    A("s_cbranch_scc1 L_end")
    A("s_load_dwordx16 s[8:23], s[0:1], 0")
    A("v_lshrrev_b32 v7, 6, v0")
    A("v_and_b32 v0, 63, v0")
    A(f"v_readfirstlane_b32 s{sWAVE}, v7")
    if opt.map == 1:
        A(f"s_and_b32 s{sH}, s2, 7")
        A(f"s_lshr_b32 s{sS}, s2, 3")
    else:
        A(f"s_lshr_b32 s{sH}, s2, 5")
        A(f"s_and_b32 s{sS}, s2, 31")
    if opt.wvmap == 0:
        A(f"s_lshl_b32 s{sWV}, s{sWAVE}, 5")
        A(f"s_add_u32 s{sWV}, s{sWV}, s{sS}")
    else:
        A(f"s_lshl_b32 s{sWV}, s{sS}, 3")
        A(f"s_add_u32 s{sWV}, s{sWV}, s{sWAVE}")
    A("v_and_b32 v8, 1, v0")
    A("v_bfe_u32 v9, v0, 1, 3")
    A("v_lshlrev_b32 v10, 13, v8")
    A("v_lshl_add_u32 v10, v9, 10, v10")
    A(f"s_lshl_b32 s{sT}, s{sWV}, 2")
    A("v_lshlrev_b32 v11, 12, v9")
    A(f"s_lshl_b32 s{sLANE}, s{sWV}, 4")
    A(f"v_add_u32 v11, s{sLANE}, v11")
    A("v_and_b32 v12, 15, v0")
    A("v_lshrrev_b32 v13, 4, v0")
    A(f"s_lshl_b32 s{sT2}, s{sH}, 8")
    if opt.kpat == 'C':
        A(f"v_lshlrev_b32 v{vK}, 11, v12")
        A(f"v_lshl_add_u32 v{vK}, v13, 4, v{vK}")
        A(f"v_add_u32 v{vK}, s{sT2}, v{vK}")
    A(f"v_lshlrev_b32 v{vV}, 13, v13")
    A(f"v_lshl_add_u32 v{vV}, v12, 4, v{vV}")
    A(f"v_add_u32 v{vV}, s{sT2}, v{vV}")
    if opt.kpat != 'C':
        A(f"v_mov_b32 v{vK}, v{vV}")
    A("v_lshrrev_b32 v14, 2, v12")
    A("v_lshlrev_b32 v14, 8, v14")
    A("v_lshl_add_u32 v14, v13, 4, v14")
    A(f"v_lshlrev_b32 v{vTOK}, 2, v13")
    A(f"s_lshl_b32 s{sOFF}, s{sH}, 10")
    A(f"s_add_u32 s{sOFF2}, s{sOFF}, 8192")
    A(f"s_mov_b32 s{sSIZE}, {KV_BYTES}")
    A(f"s_mov_b32 s{sC}, {f2u(SCALE):#x}")
    A("s_waitcnt lgkmcnt(0)")
    def srd(s, p, size):
        A(f"s_mov_b32 s{s}, s{p}")
        A(f"s_and_b32 s{s+1}, s{p+1}, 0xffff")
        A(f"s_mov_b32 s{s+2}, {size}")
        A(f"s_mov_b32 s{s+3}, 0x20000")
    srd(sBT, 14, 2 * 2048 * 4)
    A(f"buffer_load_dword v15, v10, {sr(sBT,4)}, s{sT} offen")
    A(f"s_load_dwordx2 s[{sCTX0}:{sCTX1}], s[16:17], 0")
    srd(sQ, 8, 2 * 32 * 128 * 2)
    for b in range(2):
        for i in range(4):
            A(f"buffer_load_dwordx4 {vr(Q[b]+4*i,4)}, v14, {sr(sQ,4)}, s{sOFF if b==0 else sOFF2} offen offset:{64*i}")
    srd(sK, 10, KV_BYTES)
    srd(sV, 12, KV_BYTES)
    srd(sWS, 22, 0x200000)
    A("v_and_b32 v7, 3, v12")
    A("v_and_b32 v9, 1, v7")
    A("v_lshlrev_b32 v9, 4, v9")
    A("v_mov_b32 v10, 0xffff")
    A("v_lshlrev_b32 v10, v9, v10")
    A("v_cmp_gt_u32 vcc, 2, v7")
    A("s_nop 1")
    A(f"v_cndmask_b32 v{vM0}, 0, v10, vcc")
    A(f"v_cndmask_b32 v{vM1}, v10, 0, vcc") if False else None
    A(f"v_xor_b32 v{vM1}, v{vM0}, v10")
    for b in range(2):
        for i in range(8):
            A(f"v_mov_b32 v{O[b]+i}, 0")
        A(f"v_mov_b32 v{M[b]}, {f2u(-1e30):#x}")
        A(f"v_mov_b32 v{L[b]}, 0")
    A("s_waitcnt lgkmcnt(0)")
    for b, (sc, sz) in enumerate(((sCTX0, sZ0), (sCTX1, sZ1))):
        A(f"s_cmp_lt_i32 s{sc}, 1")
        A(f"s_cselect_b32 s{sz}, 1, 0")
        A(f"s_cselect_b32 s{sc}, 0x8000, s{sc}")
    A("v_cmp_eq_u32 vcc, 1, v8")
    A(f"v_mov_b32 v7, s{sCTX0}")
    A(f"v_mov_b32 v9, s{sCTX1}")
    A("v_cndmask_b32 v10, v7, v9, vcc")
    A("v_cndmask_b32 v9, v9, v7, vcc")
    A("v_sub_u32 v10, v10, v11")
    A("v_sub_u32 v9, v9, v11")
    A("v_med3_i32 v10, v10, 0, 16")
    A("v_med3_i32 v9, v9, 0, 16")
    A("v_lshlrev_b32 v9, 5, v9")
    A("v_lshlrev_b32 v7, 5, v10")
    A("v_or_b32 v9, v9, v10")
    A("v_cndmask_b32 v9, v9, 0, vcc") if False else None
    A("v_cndmask_b32 v10, v10, v7, vcc")
    A("v_mov_b32 v7, 0")
    A("v_cndmask_b32 v9, v9, v7, vcc")
    A("s_waitcnt vmcnt(8)")
    A("v_min_u32 v15, 3071, v15")
    A("s_nop 1")
    A("v_mov_b32_dpp v13, v15 quad_perm:[1,0,3,2] row_mask:0xf bank_mask:0xf")
    A("v_cmp_eq_u32 vcc, v13, v15")
    A("s_nop 1")
    A("v_cndmask_b32 v9, v10, v9, vcc")
    A("v_cmp_gt_u32 vcc, 16, v0")
    A("s_nop 1")
    A("v_cndmask_b32 v9, v7, v9, vcc")
    A("v_cmp_ne_u32 vcc, 0, v9")
    A(f"v_lshl_or_b32 v{vDESC}, v15, 15, v9")
    A("s_nop 1")
    A(f"s_mov_b32 s{sMASK}, vcc_lo")

    def next_item(dst):
        A(f"s_ff1_i32_b32 s{sLANE}, s{sMASK}")
        A(f"s_bitset0_b32 s{sMASK}, s{sLANE}")
        A(f"v_readlane_b32 s{sDESC}, v{vDESC}, s{sLANE}")
        A("s_nop 3")
        A(f"s_and_b32 s{sOFF}, s{sDESC}, 0xffff8000")
        A(f"s_add_u32 s{sOFF2}, s{sOFF}, 4096")
        A(f"s_and_b32 s{dst}, s{sDESC}, 0x3ff")
        A(f"s_cselect_b32 s{sK+2}, s{sSIZE}, 0")
    def load_k(r):
        for i in range(4):
            if opt.kpat == 'C':
                A(f"buffer_load_dwordx4 {vr(RK[r]+4*i,4)}, v{vK}, {sr(sK,4)}, s{sOFF} offen offset:{64*i}{hint}")
            else:
                A(f"buffer_load_dwordx4 {vr(RK[r]+4*i,4)}, v{vK}, {sr(sK,4)}, s{sOFF if i<2 else sOFF2} offen offset:{2048*(i&1)}{hint}")
    def load_v(r):
        A(f"s_mov_b32 s{sV+2}, s{sK+2}")
        for i in range(4):
            A(f"buffer_load_dwordx4 {vr(RV[r]+4*i,4)}, v{vV}, {sr(sV,4)}, s{sOFF if i<2 else sOFF2} offen offset:{2048*(i&1)}{hint}")

    for r in range(R):
        next_item(sN[r])
        load_k(r)
        load_v(r)
    A(f"s_or_b32 s{sT}, s{sZ0}, s{sZ1}")
    A("s_cbranch_scc0 L_loop")
    A(f"s_waitcnt vmcnt({8*R})")
    for b, sz in enumerate((sZ0, sZ1)):
        A(f"s_cmp_eq_u32 s{sz}, 0")
        A(f"s_cbranch_scc1 L_noz{b}")
        for i in range(16):
            A(f"v_mov_b32 v{Q[b]+i}, 0")
        A.label(f"L_noz{b}")
    A.label("L_loop")

    def qk(b, r, sn, tag):
        K = RK[r]
        for i in range(4):
            c = "0" if i == 0 else vr(S, 4)
            A(f"v_mfma_f32_16x16x32_bf16 {vr(S,4)}, {vr(K+4*i,4)}, {vr(Q[b]+4*i,4)}, {c}")
        A("s_nop 6")
        A(f"s_cmp_eq_u32 s{sn}, 16")
        A(f"s_cbranch_scc1 L_nomask_{tag}")
        A(f"v_mov_b32 v{T}, {f2u(-1e30):#x}")
        for i in range(4):
            A(f"v_cmp_gt_i32 vcc, s{sn}, v{vTOK}")
            A(f"s_sub_u32 s{sn}, s{sn}, 1")
            A("s_nop 0")
            A(f"v_cndmask_b32 v{S+i}, v{T}, v{S+i}, vcc")
        A.label(f"L_nomask_{tag}")
        t0, t1, t2, t3 = T, T + 1, T + 2, T + 3
        A(f"v_max3_f32 v{t0}, v{S}, v{S+1}, v{S+2}")
        A(f"v_max_f32 v{t0}, v{t0}, v{S+3}")
        A(f"v_mov_b32 v{t1}, v{t0}")
        A("s_nop 1")
        A(f"v_permlane32_swap_b32 v{t0}, v{t1}")
        A("s_nop 1")
        A(f"v_max_f32 v{t0}, v{t0}, v{t1}")
        A(f"v_mov_b32 v{t1}, v{t0}")
        A("s_nop 1")
        A(f"v_permlane16_swap_b32 v{t0}, v{t1}")
        A("s_nop 1")
        A(f"v_max_f32 v{t0}, v{t0}, v{t1}")
        A(f"v_mul_f32 v{t0}, s{sC}, v{t0}")
        A(f"v_max_f32 v{t0}, v{M[b]}, v{t0}")
        A(f"v_sub_f32 v{t1}, v{M[b]}, v{t0}")
        A(f"v_mov_b32 v{M[b]}, v{t0}")
        A(f"v_exp_f32 v{t1}, v{t1}")
        for i in range(4):
            A(f"v_fma_f32 v{S+i}, v{S+i}, s{sC}, -v{t0}")
        for i in range(4):
            A(f"v_exp_f32 v{S+i}, v{S+i}")
        for i in range(8):
            A(f"v_mul_f32 v{O[b]+i}, v{t1}, v{O[b]+i}")
        A(f"v_add_f32 v{t2}, v{S}, v{S+1}")
        A(f"v_add_f32 v{t3}, v{S+2}, v{S+3}")
        A(f"v_add_f32 v{t2}, v{t2}, v{t3}")
        A(f"v_fma_f32 v{L[b]}, v{L[b]}, v{t1}, v{t2}")
        for i in range(4):
            A(f"v_cvt_pk_bf16_f32 v{S+i}, v{S+i}, v{S+i}")
        for i in range(4):
            A(f"v_and_b32 v{B[b]+2*i}, v{S+i}, v{vM0}")
            A(f"v_and_b32 v{B[b]+2*i+1}, v{S+i}, v{vM1}")
    def pv(b, r):
        V = RV[r]
        for i in range(4):
            A(f"v_mfma_f32_16x16x16_bf16 {vr(O[b],4)}, {vr(V+4*i,2)}, {vr(B[b]+2*i,2)}, {vr(O[b],4)}")
            A(f"v_mfma_f32_16x16x16_bf16 {vr(O[b]+4,4)}, {vr(V+4*i+2,2)}, {vr(B[b]+2*i,2)}, {vr(O[b]+4,4)}")

    W = 8 * (R - 1) + 4
    for r in range(R):
        A(f"s_cmp_eq_u32 s{sN[r]}, 0")
        A("s_cbranch_scc1 L_done")
        A(f"s_waitcnt vmcnt({W})")
        A(f"s_and_b32 s{sT}, s{sN[r]}, 31")
        A(f"s_cbranch_scc0 L_sk0_{r}")
        qk(0, r, sT, f"0_{r}")
        A.label(f"L_sk0_{r}")
        A(f"s_lshr_b32 s{sT}, s{sN[r]}, 5")
        A(f"s_cbranch_scc0 L_sk1_{r}")
        qk(1, r, sT, f"1_{r}")
        A.label(f"L_sk1_{r}")
        next_item(sNN)
        load_k(r)
        A(f"s_waitcnt vmcnt({W})")
        A(f"s_and_b32 s{sT}, s{sN[r]}, 31")
        A(f"s_cbranch_scc0 L_pv0_{r}")
        pv(0, r)
        A.label(f"L_pv0_{r}")
        A(f"s_lshr_b32 s{sT}, s{sN[r]}, 5")
        A(f"s_cbranch_scc0 L_pv1_{r}")
        pv(1, r)
        A.label(f"L_pv1_{r}")
        load_v(r)
        A(f"s_mov_b32 s{sN[r]}, s{sNN}")
    A("s_branch L_loop")

    A.label("L_done")
    for b in range(2):
        t = T + 2 * b
        A(f"v_mov_b32 v{t}, v{L[b]}")
    A("s_nop 1")
    for b in range(2):
        A(f"v_permlane32_swap_b32 v{L[b]}, v{T+2*b}")
    A("s_nop 1")
    for b in range(2):
        A(f"v_add_f32 v{L[b]}, v{L[b]}, v{T+2*b}")
        A(f"v_mov_b32 v{T+2*b}, v{L[b]}")
    A("s_nop 1")
    for b in range(2):
        A(f"v_permlane16_swap_b32 v{L[b]}, v{T+2*b}")
    A("s_nop 1")
    for b in range(2):
        A(f"v_add_f32 v{L[b]}, v{L[b]}, v{T+2*b}")
    MLB = 33792
    A("v_and_b32 v12, 15, v0")
    A("v_lshrrev_b32 v13, 4, v0")
    A("v_lshrrev_b32 v14, 2, v12")
    A("v_and_b32 v12, 3, v12")
    A(f"s_lshl_b32 s{sT}, s{sWAVE}, 3")
    A(f"v_add_u32 v14, s{sT}, v14")
    A(f"v_lshlrev_b32 v7, 3, v14")
    A(f"v_add_u32 v7, {MLB}, v7")
    A("v_mul_u32_u24 v8, 132, v14")
    A("v_lshl_add_u32 v8, v13, 5, v8")
    A("v_add_u32 v8, v8, v12")
    A("v_lshlrev_b32 v8, 2, v8")
    A(f"v_add_u32 v9, {4*132*4}, v8")
    A(f"ds_write_b64 v7, {vr(M[0],2)}")
    A(f"ds_write_b64 v7, {vr(M[1],2)} offset:32")
    for b in range(2):
        for i in range(4):
            A(f"ds_write2_b32 v{8+b}, v{O[b]+i}, v{O[b]+4+i} offset0:{8*i} offset1:{8*i+4}")
    A("s_waitcnt vmcnt(0) lgkmcnt(0)")
    A("s_barrier")
    A(f"s_cmp_ge_u32 s{sWAVE}, 4")
    A("s_cbranch_scc1 L_end")
    A(f"s_lshl_b32 s{sT}, s{sWAVE}, 1")
    A("v_lshrrev_b32 v7, 5, v0")
    A(f"v_add_u32 v7, s{sT}, v7")
    A("v_and_b32 v8, 31, v0")
    A("v_lshlrev_b32 v9, 3, v7")
    A(f"v_add_u32 v9, {MLB}, v9")
    A("v_mul_u32_u24 v10, 528, v7")
    A("v_lshl_add_u32 v10, v8, 4, v10")
    ML = 96
    OO = 112
    for w in range(8):
        A(f"ds_read_b64 {vr(ML+2*w,2)}, v9 offset:{64*w}")
    for w in range(8):
        A(f"ds_read_b128 {vr(OO+4*w,4)}, v10 offset:{4224*w}")
    A(f"s_lshl_b32 s{sT}, s{sH}, 5")
    A(f"s_add_u32 s{sT}, s{sT}, s{sS}")
    A(f"s_lshl_b32 s{sT}, s{sT}, 12")
    A("v_lshlrev_b32 v11, 9, v7")
    A("v_lshl_add_u32 v11, v8, 4, v11")
    A(f"s_lshl_b32 s{sT2}, s{sH}, 11")
    A(f"s_lshl_b32 s{sLANE}, s{sS}, 3")
    A(f"s_add_u32 s{sT2}, s{sT2}, s{sLANE}")
    A(f"s_add_u32 s{sT2}, s{sT2}, 0x100000")
    A("v_lshlrev_b32 v12, 8, v7")
    A("s_waitcnt lgkmcnt(8)")
    A(f"v_max3_f32 v14, v{ML}, v{ML+2}, v{ML+4}")
    A(f"v_max3_f32 v14, v14, v{ML+6}, v{ML+8}")
    A(f"v_max3_f32 v14, v14, v{ML+10}, v{ML+12}")
    A(f"v_max_f32 v14, v14, v{ML+14}")
    for w in range(8):
        A(f"v_sub_f32 v{ML+2*w}, v{ML+2*w}, v14")
    for w in range(8):
        A(f"v_exp_f32 v{ML+2*w}, v{ML+2*w}")
    A("s_nop 0")
    A(f"v_mul_f32 v15, v{ML}, v{ML+1}")
    for w in range(1, 8):
        A(f"v_fmac_f32 v15, v{ML+2*w}, v{ML+2*w+1}")
    A("s_waitcnt lgkmcnt(0)")
    for i in range(4):
        A(f"v_mul_f32 v{S+i}, v{ML}, v{OO+i}")
    for w in range(1, 8):
        for i in range(4):
            A(f"v_fmac_f32 v{S+i}, v{ML+2*w}, v{OO+4*w+i}")
    A(f"buffer_store_dwordx4 {vr(S,4)}, v11, {sr(sWS,4)}, s{sT} offen")
    A("v_cmp_eq_u32 vcc, 0, v8")
    A("s_and_saveexec_b64 s[68:69], vcc")
    A(f"buffer_store_dwordx2 v[14:15], v12, {sr(sWS,4)}, s{sT2} offen")
    A.label("L_end")
    A("s_endpgm")

    A.raw(""".globl attn_combine_kernel
.p2align 8
.type attn_combine_kernel,@function
attn_combine_kernel:""")
    A("s_cmp_ge_u32 s2, 128")
    A("s_cbranch_scc1 L_cend")
    A("s_load_dwordx2 s[4:5], s[0:1], 40")
    A("s_load_dwordx2 s[6:7], s[0:1], 56")
    A("s_lshr_b32 s16, s2, 4")
    A("s_bfe_u32 s17, s2, 0x30001")
    A("s_and_b32 s18, s2, 1")
    A("v_lshrrev_b32 v1, 4, v0")
    A("v_and_b32 v2, 15, v0")
    A("v_lshlrev_b32 v3, 15, v1")
    A("v_lshl_add_u32 v3, v2, 4, v3")
    A("s_lshl_b32 s19, s16, 17")
    A("s_lshl_b32 s20, s17, 9")
    A("s_add_u32 s19, s19, s20")
    A("s_lshl_b32 s20, s18, 8")
    A("s_add_u32 s19, s19, s20")
    A("s_lshl_b32 s20, s16, 3")
    A("s_add_u32 s20, s20, s17")
    A("s_lshl_b32 s20, s20, 8")
    A("s_add_u32 s20, s20, 0x100000")
    A("v_lshlrev_b32 v4, 6, v1")
    A("s_lshr_b32 s21, s17, 2")
    A("s_lshl_b32 s21, s21, 5")
    A("s_lshl_b32 s22, s16, 2")
    A("s_add_u32 s21, s21, s22")
    A("s_and_b32 s22, s17, 3")
    A("s_add_u32 s21, s21, s22")
    A("s_lshl_b32 s21, s21, 8")
    A("s_lshl_b32 s22, s18, 7")
    A("s_add_u32 s21, s21, s22")
    A("v_lshlrev_b32 v5, 3, v2")
    A("s_waitcnt lgkmcnt(0)")
    A("s_mov_b32 s8, s6")
    A("s_and_b32 s9, s7, 0xffff")
    A("s_mov_b32 s10, 0x200000")
    A("s_mov_b32 s11, 0x20000")
    A("s_mov_b32 s12, s4")
    A("s_and_b32 s13, s5, 0xffff")
    A("s_mov_b32 s14, 16384")
    A("s_mov_b32 s15, 0x20000")
    ML = 8; OO = 24
    for i in range(4):
        A(f"buffer_load_dwordx4 {vr(ML+4*i,4)}, v4, s[8:11], s20 offen offset:{16*i}")
    for it in range(8):
        A(f"buffer_load_dwordx4 {vr(OO+4*it,4)}, v3, s[8:11], s19 offen")
        if it < 7:
            A("s_add_u32 s19, s19, 4096")
    A("s_waitcnt vmcnt(8)")
    A(f"v_max3_f32 v6, v{ML}, v{ML+2}, v{ML+4}")
    A(f"v_max3_f32 v6, v6, v{ML+6}, v{ML+8}")
    A(f"v_max3_f32 v6, v6, v{ML+10}, v{ML+12}")
    A(f"v_max_f32 v6, v6, v{ML+14}")
    A("v_mov_b32 v7, v6")
    A("s_nop 1")
    A("v_permlane32_swap_b32 v6, v7")
    A("s_nop 1")
    A("v_max_f32 v6, v6, v7")
    A("v_mov_b32 v7, v6")
    A("s_nop 1")
    A("v_permlane16_swap_b32 v6, v7")
    A("s_nop 1")
    A("v_max_f32 v6, v6, v7")
    for w in range(8):
        A(f"v_sub_f32 v{ML+2*w}, v{ML+2*w}, v6")
    for w in range(8):
        A(f"v_exp_f32 v{ML+2*w}, v{ML+2*w}")
    A("s_nop 0")
    AC = 56
    A(f"v_mul_f32 v{AC+4}, v{ML}, v{ML+1}")
    for w in range(1, 8):
        A(f"v_fmac_f32 v{AC+4}, v{ML+2*w}, v{ML+2*w+1}")
    for w in range(8):
        A(f"s_waitcnt vmcnt({7-w})")
        for i in range(4):
            if w == 0:
                A(f"v_mul_f32 v{AC+i}, v{ML}, v{OO+i}")
            else:
                A(f"v_fmac_f32 v{AC+i}, v{ML+2*w}, v{OO+4*w+i}")
    for sw in ("v_permlane32_swap_b32", "v_permlane16_swap_b32"):
        for i in range(5):
            A(f"v_mov_b32 v{AC+8+i}, v{AC+i}")
        A("s_nop 1")
        for i in range(5):
            A(f"{sw} v{AC+i}, v{AC+8+i}")
        A("s_nop 1")
        for i in range(5):
            A(f"v_add_f32 v{AC+i}, v{AC+i}, v{AC+8+i}")
    A(f"v_rcp_f32 v{AC+4}, v{AC+4}")
    A("s_nop 0")
    for i in range(4):
        A(f"v_mul_f32 v{AC+i}, v{AC+i}, v{AC+4}")
    A(f"v_cvt_pk_bf16_f32 v{AC}, v{AC}, v{AC+1}")
    A(f"v_cvt_pk_bf16_f32 v{AC+1}, v{AC+2}, v{AC+3}")
    A("v_cmp_gt_u32 vcc, 16, v0")
    A("s_and_saveexec_b64 s[24:25], vcc")
    A(f"buffer_store_dwordx2 {vr(AC,2)}, v5, s[12:15], s21 offen")
    A.label("L_cend")
    A("s_endpgm")

    def kd(name, nv, ns):
        acc = (nv + 3) // 4 * 4
        return f""".amdhsa_kernel {name}
  .amdhsa_next_free_vgpr {nv}
  .amdhsa_next_free_sgpr {ns}
  .amdhsa_accum_offset {acc}
  .amdhsa_group_segment_fixed_size 0
  .amdhsa_kernarg_size 64
  .amdhsa_user_sgpr_count 2
  .amdhsa_user_sgpr_kernarg_segment_ptr 1
  .amdhsa_system_sgpr_workgroup_id_x 1
.end_amdhsa_kernel"""
    A.raw('.section .rodata,"a"')
    A.raw(".p2align 6")
    A.raw(kd(f"{NAME}_kernel", NV, 72))
    A.raw(".p2align 6")
    A.raw(kd("attn_combine_kernel", 72, 32))
    return A.text()

if __name__ == "__main__":
    p = argparse.ArgumentParser()
    p.add_argument("--ring", type=int, default=4)
    p.add_argument("--hint", default="")
    p.add_argument("--map", type=int, default=1)
    p.add_argument("--wvmap", type=int, default=0)
    p.add_argument("--kpat", default="C")
    p.add_argument("-o", default="/dev/stdout")
    o = p.parse_args()
    if o.hint: o.hint = " " + o.hint
    open(o.o, "w").write(gen(o))
```

```python
import sys, argparse

NAME = "standalone__paged_block_table_kv_radixattention__decode"
KV_BYTES = 3072 * 32768
SCALE = (128 ** -0.5) * 1.4426950408889634
import struct
def f2u(x): return struct.unpack("<I", struct.pack("<f", x))[0]

class Asm:
    def __init__(self): self.l = []
    def __call__(self, s): self.l.append("    " + s)
    def label(self, s): self.l.append(s + ":")
    def raw(self, s): self.l.append(s)
    def text(self): return "\n".join(self.l) + "\n"

def vr(a, n): return f"v[{a}:{a+n-1}]"
def sr(a, n): return f"s[{a}:{a+n-1}]"

def gen(opt):
    R = opt.ring
    A = Asm()
    hint = opt.hint
    header = f"""; Paged-KV (block table, shared radix prefix) GQA decode attention, split-KV + combine.
; @launch kernel={NAME}_kernel grid=(256,1,1) block=(512,1,1) lds=34304
; @launch kernel=attn_combine_kernel grid=(128,1,1) block=(64,1,1) lds=0
.amdgcn_target "amdgcn-amd-amdhsa--gfx950"
.text
.globl {NAME}_kernel
.p2align 8
.type {NAME}_kernel,@function
{NAME}_kernel:"""
    A.raw(header)
    sK, sV, sQ, sBT, sWS = 24, 28, 32, 36, 40
    sCTX0, sCTX1 = 44, 45
    sH, sS, sWAVE, sWV, sMASK, sLANE, sDESC, sOFF = 46, 47, 48, 49, 50, 51, 52, 53
    sN = [54, 55, 56, 57, 62, 63]
    sT, sC, sNN, sOFF2 = 58, 59, 60, 61
    sZ0, sZ1 = 64, 65
    sT2 = 66
    sSIZE = 67
    vK, vV, vM0, vM1, vTOK, vDESC = 1, 2, 3, 4, 5, 6
    Q = [16, 32]
    O = [48, 56]
    M = [64, 66]; L = [65, 67]
    S = 68
    B = [72, 80]
    T = 88
    RK = [96 + 32 * r for r in range(R)]
    RV = [112 + 32 * r for r in range(R)]
    NV = 96 + 32 * R

    A("s_cmp_ge_u32 s2, 256")
    A("s_cbranch_scc1 L_end")
    if opt.pad1 or opt.stamps: A("s_memrealtime s[70:71]")
    A("s_load_dwordx16 s[8:23], s[0:1], 0")
    A("v_lshrrev_b32 v7, 6, v0")
    A("v_and_b32 v0, 63, v0")
    A(f"v_readfirstlane_b32 s{sWAVE}, v7")
    if opt.map == 1:
        A(f"s_and_b32 s{sH}, s2, 7")
        A(f"s_lshr_b32 s{sS}, s2, 3")
    else:
        A(f"s_lshr_b32 s{sH}, s2, 5")
        A(f"s_and_b32 s{sS}, s2, 31")
    if opt.wvmap == 0:
        A(f"s_lshl_b32 s{sWV}, s{sWAVE}, 5")
        A(f"s_add_u32 s{sWV}, s{sWV}, s{sS}")
    else:
        A(f"s_lshl_b32 s{sWV}, s{sS}, 3")
        A(f"s_add_u32 s{sWV}, s{sWV}, s{sWAVE}")
    A("v_and_b32 v8, 1, v0")
    A("v_bfe_u32 v9, v0, 1, 3")
    A("v_lshlrev_b32 v10, 13, v8")
    A("v_lshl_add_u32 v10, v9, 10, v10")
    A(f"s_lshl_b32 s{sT}, s{sWV}, 2")
    A("v_lshlrev_b32 v11, 12, v9")
    A(f"s_lshl_b32 s{sLANE}, s{sWV}, 4")
    A(f"v_add_u32 v11, s{sLANE}, v11")
    A("v_and_b32 v12, 15, v0")
    A("v_lshrrev_b32 v13, 4, v0")
    A(f"s_lshl_b32 s{sT2}, s{sH}, 8")
    if opt.kpat == 'C':
        A(f"v_lshlrev_b32 v{vK}, 11, v12")
        A(f"v_lshl_add_u32 v{vK}, v13, 4, v{vK}")
        A(f"v_add_u32 v{vK}, s{sT2}, v{vK}")
    A(f"v_lshlrev_b32 v{vV}, 13, v13")
    A(f"v_lshl_add_u32 v{vV}, v12, 4, v{vV}")
    A(f"v_add_u32 v{vV}, s{sT2}, v{vV}")
    if opt.kpat != 'C':
        A(f"v_mov_b32 v{vK}, v{vV}")
    A("v_lshrrev_b32 v14, 2, v12")
    A("v_lshlrev_b32 v14, 8, v14")
    A("v_lshl_add_u32 v14, v13, 4, v14")
    A(f"v_lshlrev_b32 v{vTOK}, 2, v13")
    A(f"s_lshl_b32 s{sOFF}, s{sH}, 10")
    A(f"s_add_u32 s{sOFF2}, s{sOFF}, 8192")
    A(f"s_mov_b32 s{sSIZE}, {KV_BYTES}")
    A(f"s_mov_b32 s{sC}, {f2u(SCALE):#x}")
    A("s_waitcnt lgkmcnt(0)")
    def srd(s, p, size):
        A(f"s_mov_b32 s{s}, s{p}")
        A(f"s_and_b32 s{s+1}, s{p+1}, 0xffff")
        A(f"s_mov_b32 s{s+2}, {size}")
        A(f"s_mov_b32 s{s+3}, 0x20000")
    srd(sBT, 14, 2 * 2048 * 4)
    A(f"buffer_load_dword v15, v10, {sr(sBT,4)}, s{sT} offen")
    A(f"s_load_dwordx2 s[{sCTX0}:{sCTX1}], s[16:17], 0")
    srd(sQ, 8, 2 * 32 * 128 * 2)
    for b in range(2):
        for i in range(4):
            A(f"buffer_load_dwordx4 {vr(Q[b]+4*i,4)}, v14, {sr(sQ,4)}, s{sOFF if b==0 else sOFF2} offen offset:{64*i}")
    srd(sK, 10, KV_BYTES)
    srd(sV, 12, KV_BYTES)
    srd(sWS, 22, 0x200000)
    A("v_and_b32 v7, 3, v12")
    A("v_and_b32 v9, 1, v7")
    A("v_lshlrev_b32 v9, 4, v9")
    A("v_mov_b32 v10, 0xffff")
    A("v_lshlrev_b32 v10, v9, v10")
    A("v_cmp_gt_u32 vcc, 2, v7")
    A("s_nop 1")
    A(f"v_cndmask_b32 v{vM0}, 0, v10, vcc")
    A(f"v_cndmask_b32 v{vM1}, v10, 0, vcc") if False else None
    A(f"v_xor_b32 v{vM1}, v{vM0}, v10")
    for b in range(2):
        for i in range(8):
            A(f"v_mov_b32 v{O[b]+i}, 0")
        A(f"v_mov_b32 v{M[b]}, {f2u(-1e30):#x}")
        A(f"v_mov_b32 v{L[b]}, 0")
    A("s_waitcnt lgkmcnt(0)")
    for b, (sc, sz) in enumerate(((sCTX0, sZ0), (sCTX1, sZ1))):
        A(f"s_cmp_lt_i32 s{sc}, 1")
        A(f"s_cselect_b32 s{sz}, 1, 0")
        A(f"s_cselect_b32 s{sc}, 0x8000, s{sc}")
    A("v_cmp_eq_u32 vcc, 1, v8")
    A(f"v_mov_b32 v7, s{sCTX0}")
    A(f"v_mov_b32 v9, s{sCTX1}")
    A("v_cndmask_b32 v10, v7, v9, vcc")
    A("v_cndmask_b32 v9, v9, v7, vcc")
    A("v_sub_u32 v10, v10, v11")
    A("v_sub_u32 v9, v9, v11")
    A("v_med3_i32 v10, v10, 0, 16")
    A("v_med3_i32 v9, v9, 0, 16")
    A("v_lshlrev_b32 v9, 5, v9")
    A("v_lshlrev_b32 v7, 5, v10")
    A("v_or_b32 v9, v9, v10")
    A("v_cndmask_b32 v9, v9, 0, vcc") if False else None
    A("v_cndmask_b32 v10, v10, v7, vcc")
    A("v_mov_b32 v7, 0")
    A("v_cndmask_b32 v9, v9, v7, vcc")
    A("s_waitcnt vmcnt(8)")
    if opt.stamps: A("s_memrealtime s[72:73]")
    A("v_min_u32 v15, 3071, v15")
    A("s_nop 1")
    A("v_mov_b32_dpp v13, v15 quad_perm:[1,0,3,2] row_mask:0xf bank_mask:0xf")
    A("v_cmp_eq_u32 vcc, v13, v15")
    A("s_nop 1")
    A("v_cndmask_b32 v9, v10, v9, vcc")
    A("v_cmp_gt_u32 vcc, 16, v0")
    A("s_nop 1")
    A("v_cndmask_b32 v9, v7, v9, vcc")
    A("v_cmp_ne_u32 vcc, 0, v9")
    A(f"v_lshl_or_b32 v{vDESC}, v15, 15, v9")
    A("s_nop 1")
    A(f"s_mov_b32 s{sMASK}, vcc_lo")

    def next_item(dst):
        A(f"s_ff1_i32_b32 s{sLANE}, s{sMASK}")
        A(f"s_bitset0_b32 s{sMASK}, s{sLANE}")
        A(f"v_readlane_b32 s{sDESC}, v{vDESC}, s{sLANE}")
        A("s_nop 3")
        A(f"s_and_b32 s{sOFF}, s{sDESC}, 0xffff8000")
        A(f"s_add_u32 s{sOFF2}, s{sOFF}, 4096")
        A(f"s_and_b32 s{dst}, s{sDESC}, 0x3ff")
        A(f"s_cselect_b32 s{sK+2}, s{sSIZE}, 0")
    def load_k(r):
        for i in range(4):
            if opt.kpat == 'C':
                A(f"buffer_load_dwordx4 {vr(RK[r]+4*i,4)}, v{vK}, {sr(sK,4)}, s{sOFF} offen offset:{64*i}{hint}")
            else:
                A(f"buffer_load_dwordx4 {vr(RK[r]+4*i,4)}, v{vK}, {sr(sK,4)}, s{sOFF if i<2 else sOFF2} offen offset:{2048*(i&1)}{hint}")
    def load_v(r):
        A(f"s_mov_b32 s{sV+2}, s{sK+2}")
        for i in range(4):
            A(f"buffer_load_dwordx4 {vr(RV[r]+4*i,4)}, v{vV}, {sr(sV,4)}, s{sOFF if i<2 else sOFF2} offen offset:{2048*(i&1)}{hint}")

    for r in range(R):
        next_item(sN[r])
        load_k(r)
        load_v(r)
    A(f"s_or_b32 s{sT}, s{sZ0}, s{sZ1}")
    A("s_cbranch_scc0 L_loop")
    A(f"s_waitcnt vmcnt({8*R})")
    for b, sz in enumerate((sZ0, sZ1)):
        A(f"s_cmp_eq_u32 s{sz}, 0")
        A(f"s_cbranch_scc1 L_noz{b}")
        for i in range(16):
            A(f"v_mov_b32 v{Q[b]+i}, 0")
        A.label(f"L_noz{b}")
    if opt.stamps:
        A.label("L_loop")
        A(f"s_waitcnt vmcnt({8*(R-1)+4})")
        A("s_memrealtime s[74:75]")
        A.label("L_loop2")
    else:
        A.label("L_loop")

    def qk(b, r, sn, tag):
        K = RK[r]
        for i in range(4):
            c = "0" if i == 0 else vr(S, 4)
            A(f"v_mfma_f32_16x16x32_bf16 {vr(S,4)}, {vr(K+4*i,4)}, {vr(Q[b]+4*i,4)}, {c}")
        A("s_nop 6")
        A(f"s_cmp_eq_u32 s{sn}, 16")
        A(f"s_cbranch_scc1 L_nomask_{tag}")
        A(f"v_mov_b32 v{T}, {f2u(-1e30):#x}")
        for i in range(4):
            A(f"v_cmp_gt_i32 vcc, s{sn}, v{vTOK}")
            A(f"s_sub_u32 s{sn}, s{sn}, 1")
            A("s_nop 0")
            A(f"v_cndmask_b32 v{S+i}, v{T}, v{S+i}, vcc")
        A.label(f"L_nomask_{tag}")
        t0, t1, t2, t3 = T, T + 1, T + 2, T + 3
        A(f"v_max3_f32 v{t0}, v{S}, v{S+1}, v{S+2}")
        A(f"v_max_f32 v{t0}, v{t0}, v{S+3}")
        A(f"v_mov_b32 v{t1}, v{t0}")
        A("s_nop 1")
        A(f"v_permlane32_swap_b32 v{t0}, v{t1}")
        A("s_nop 1")
        A(f"v_max_f32 v{t0}, v{t0}, v{t1}")
        A(f"v_mov_b32 v{t1}, v{t0}")
        A("s_nop 1")
        A(f"v_permlane16_swap_b32 v{t0}, v{t1}")
        A("s_nop 1")
        A(f"v_max_f32 v{t0}, v{t0}, v{t1}")
        A(f"v_mul_f32 v{t0}, s{sC}, v{t0}")
        A(f"v_max_f32 v{t0}, v{M[b]}, v{t0}")
        A(f"v_sub_f32 v{t1}, v{M[b]}, v{t0}")
        A(f"v_mov_b32 v{M[b]}, v{t0}")
        A(f"v_exp_f32 v{t1}, v{t1}")
        for i in range(4):
            A(f"v_fma_f32 v{S+i}, v{S+i}, s{sC}, -v{t0}")
        for i in range(4):
            A(f"v_exp_f32 v{S+i}, v{S+i}")
        for i in range(8):
            A(f"v_mul_f32 v{O[b]+i}, v{t1}, v{O[b]+i}")
        A(f"v_add_f32 v{t2}, v{S}, v{S+1}")
        A(f"v_add_f32 v{t3}, v{S+2}, v{S+3}")
        A(f"v_add_f32 v{t2}, v{t2}, v{t3}")
        A(f"v_fma_f32 v{L[b]}, v{L[b]}, v{t1}, v{t2}")
        for i in range(4):
            A(f"v_cvt_pk_bf16_f32 v{S+i}, v{S+i}, v{S+i}")
        for i in range(4):
            A(f"v_and_b32 v{B[b]+2*i}, v{S+i}, v{vM0}")
            A(f"v_and_b32 v{B[b]+2*i+1}, v{S+i}, v{vM1}")
    def pv(b, r):
        V = RV[r]
        for i in range(4):
            A(f"v_mfma_f32_16x16x16_bf16 {vr(O[b],4)}, {vr(V+4*i,2)}, {vr(B[b]+2*i,2)}, {vr(O[b],4)}")
            A(f"v_mfma_f32_16x16x16_bf16 {vr(O[b]+4,4)}, {vr(V+4*i+2,2)}, {vr(B[b]+2*i,2)}, {vr(O[b]+4,4)}")

    W = 8 * (R - 1) + 4
    for r in range(R):
        A(f"s_cmp_eq_u32 s{sN[r]}, 0")
        A("s_cbranch_scc1 L_done")
        A(f"s_waitcnt vmcnt({W})")
        A(f"s_and_b32 s{sT}, s{sN[r]}, 31")
        A(f"s_cbranch_scc0 L_sk0_{r}")
        qk(0, r, sT, f"0_{r}")
        A.label(f"L_sk0_{r}")
        A(f"s_lshr_b32 s{sT}, s{sN[r]}, 5")
        A(f"s_cbranch_scc0 L_sk1_{r}")
        qk(1, r, sT, f"1_{r}")
        A.label(f"L_sk1_{r}")
        next_item(sNN)
        load_k(r)
        A(f"s_waitcnt vmcnt({W})")
        A(f"s_and_b32 s{sT}, s{sN[r]}, 31")
        A(f"s_cbranch_scc0 L_pv0_{r}")
        pv(0, r)
        A.label(f"L_pv0_{r}")
        A(f"s_lshr_b32 s{sT}, s{sN[r]}, 5")
        A(f"s_cbranch_scc0 L_pv1_{r}")
        pv(1, r)
        A.label(f"L_pv1_{r}")
        load_v(r)
        A(f"s_mov_b32 s{sN[r]}, s{sNN}")
    A("s_branch L_loop2" if opt.stamps else "s_branch L_loop")

    A.label("L_done")
    if opt.stamps: A("s_memrealtime s[76:77]")
    for b in range(2):
        t = T + 2 * b
        A(f"v_mov_b32 v{t}, v{L[b]}")
    A("s_nop 1")
    for b in range(2):
        A(f"v_permlane32_swap_b32 v{L[b]}, v{T+2*b}")
    A("s_nop 1")
    for b in range(2):
        A(f"v_add_f32 v{L[b]}, v{L[b]}, v{T+2*b}")
        A(f"v_mov_b32 v{T+2*b}, v{L[b]}")
    A("s_nop 1")
    for b in range(2):
        A(f"v_permlane16_swap_b32 v{L[b]}, v{T+2*b}")
    A("s_nop 1")
    for b in range(2):
        A(f"v_add_f32 v{L[b]}, v{L[b]}, v{T+2*b}")
    MLB = 33792
    A("v_and_b32 v12, 15, v0")
    A("v_lshrrev_b32 v13, 4, v0")
    A("v_lshrrev_b32 v14, 2, v12")
    A("v_and_b32 v12, 3, v12")
    A(f"s_lshl_b32 s{sT}, s{sWAVE}, 3")
    A(f"v_add_u32 v14, s{sT}, v14")
    A(f"v_lshlrev_b32 v7, 3, v14")
    A(f"v_add_u32 v7, {MLB}, v7")
    A("v_mul_u32_u24 v8, 132, v14")
    A("v_lshl_add_u32 v8, v13, 5, v8")
    A("v_add_u32 v8, v8, v12")
    A("v_lshlrev_b32 v8, 2, v8")
    A(f"v_add_u32 v9, {4*132*4}, v8")
    A(f"ds_write_b64 v7, {vr(M[0],2)}")
    A(f"ds_write_b64 v7, {vr(M[1],2)} offset:32")
    for b in range(2):
        for i in range(4):
            A(f"ds_write2_b32 v{8+b}, v{O[b]+i}, v{O[b]+4+i} offset0:{8*i} offset1:{8*i+4}")
    A("s_waitcnt vmcnt(0) lgkmcnt(0)")
    A("s_barrier")
    if opt.stamps: A("s_memrealtime s[78:79]")
    A(f"s_cmp_ge_u32 s{sWAVE}, 4")
    A("s_cbranch_scc1 L_fin")
    A(f"s_lshl_b32 s{sT}, s{sWAVE}, 1")
    A("v_lshrrev_b32 v7, 5, v0")
    A(f"v_add_u32 v7, s{sT}, v7")
    A("v_and_b32 v8, 31, v0")
    A("v_lshlrev_b32 v9, 3, v7")
    A(f"v_add_u32 v9, {MLB}, v9")
    A("v_mul_u32_u24 v10, 528, v7")
    A("v_lshl_add_u32 v10, v8, 4, v10")
    ML = 96
    OO = 112
    for w in range(8):
        A(f"ds_read_b64 {vr(ML+2*w,2)}, v9 offset:{64*w}")
    for w in range(8):
        A(f"ds_read_b128 {vr(OO+4*w,4)}, v10 offset:{4224*w}")
    A(f"s_lshl_b32 s{sT}, s{sH}, 5")
    A(f"s_add_u32 s{sT}, s{sT}, s{sS}")
    A(f"s_lshl_b32 s{sT}, s{sT}, 12")
    A("v_lshlrev_b32 v11, 9, v7")
    A("v_lshl_add_u32 v11, v8, 4, v11")
    A(f"s_lshl_b32 s{sT2}, s{sH}, 11")
    A(f"s_lshl_b32 s{sLANE}, s{sS}, 3")
    A(f"s_add_u32 s{sT2}, s{sT2}, s{sLANE}")
    A(f"s_add_u32 s{sT2}, s{sT2}, 0x100000")
    A("v_lshlrev_b32 v12, 8, v7")
    A("s_waitcnt lgkmcnt(8)")
    A(f"v_max3_f32 v14, v{ML}, v{ML+2}, v{ML+4}")
    A(f"v_max3_f32 v14, v14, v{ML+6}, v{ML+8}")
    A(f"v_max3_f32 v14, v14, v{ML+10}, v{ML+12}")
    A(f"v_max_f32 v14, v14, v{ML+14}")
    for w in range(8):
        A(f"v_sub_f32 v{ML+2*w}, v{ML+2*w}, v14")
    for w in range(8):
        A(f"v_exp_f32 v{ML+2*w}, v{ML+2*w}")
    A("s_nop 0")
    A(f"v_mul_f32 v15, v{ML}, v{ML+1}")
    for w in range(1, 8):
        A(f"v_fmac_f32 v15, v{ML+2*w}, v{ML+2*w+1}")
    A("s_waitcnt lgkmcnt(0)")
    for i in range(4):
        A(f"v_mul_f32 v{S+i}, v{ML}, v{OO+i}")
    for w in range(1, 8):
        for i in range(4):
            A(f"v_fmac_f32 v{S+i}, v{ML+2*w}, v{OO+4*w+i}")
    A(f"buffer_store_dwordx4 {vr(S,4)}, v11, {sr(sWS,4)}, s{sT} offen")
    A("v_cmp_eq_u32 vcc, 0, v8")
    A("s_and_saveexec_b64 s[68:69], vcc")
    A(f"buffer_store_dwordx2 v[14:15], v12, {sr(sWS,4)}, s{sT2} offen")
    A.label("L_fin")
    if opt.stamps:
        A("s_waitcnt vmcnt(0)")
        A("s_memrealtime s[80:81]")
        A("s_mov_b64 exec, -1")
        A("s_waitcnt lgkmcnt(0)")
        A("s_add_u32 s84, s22, 0x4000000")
        A("s_addc_u32 s85, s23, 0")
        A("s_and_b32 s85, s85, 0xffff")
        A("s_mov_b32 s86, 0x100000")
        A("s_mov_b32 s87, 0x20000")
        A("s_lshl_b32 s88, s2, 3")
        A(f"s_add_u32 s88, s88, s{sWAVE}")
        A("s_mul_i32 s88, s88, 48")
        for j in range(6):
            A(f"v_mov_b32 v0, s{70+2*j}")
            A(f"v_mov_b32 v1, s{71+2*j}")
            A("v_mov_b32 v2, 0")
            A("s_mov_b64 exec, 1")
            A(f"buffer_store_dwordx2 v[0:1], v2, s[84:87], s88 offen offset:{8*j}")
            A("s_waitcnt vmcnt(0)")
    if opt.pad1:
        A.label("L_pad1")
        A("s_sleep 1")
        A("s_memrealtime s[82:83]")
        A("s_waitcnt lgkmcnt(0)")
        A("s_sub_u32 s82, s82, s70")
        A(f"s_cmp_lt_u32 s82, {opt.pad1*100}")
        A("s_cbranch_scc1 L_pad1")
    A.label("L_end")
    A("s_endpgm")

    A.raw(""".globl attn_combine_kernel
.p2align 8
.type attn_combine_kernel,@function
attn_combine_kernel:""")
    A("s_cmp_ge_u32 s2, 128")
    A("s_cbranch_scc1 L_cend")
    if opt.pad2: A("s_memrealtime s[26:27]")
    A("s_load_dwordx2 s[4:5], s[0:1], 40")
    A("s_load_dwordx2 s[6:7], s[0:1], 56")
    A("s_lshr_b32 s16, s2, 4")
    A("s_bfe_u32 s17, s2, 0x30001")
    A("s_and_b32 s18, s2, 1")
    A("v_lshrrev_b32 v1, 4, v0")
    A("v_and_b32 v2, 15, v0")
    A("v_lshlrev_b32 v3, 15, v1")
    A("v_lshl_add_u32 v3, v2, 4, v3")
    A("s_lshl_b32 s19, s16, 17")
    A("s_lshl_b32 s20, s17, 9")
    A("s_add_u32 s19, s19, s20")
    A("s_lshl_b32 s20, s18, 8")
    A("s_add_u32 s19, s19, s20")
    A("s_lshl_b32 s20, s16, 3")
    A("s_add_u32 s20, s20, s17")
    A("s_lshl_b32 s20, s20, 8")
    A("s_add_u32 s20, s20, 0x100000")
    A("v_lshlrev_b32 v4, 6, v1")
    A("s_lshr_b32 s21, s17, 2")
    A("s_lshl_b32 s21, s21, 5")
    A("s_lshl_b32 s22, s16, 2")
    A("s_add_u32 s21, s21, s22")
    A("s_and_b32 s22, s17, 3")
    A("s_add_u32 s21, s21, s22")
    A("s_lshl_b32 s21, s21, 8")
    A("s_lshl_b32 s22, s18, 7")
    A("s_add_u32 s21, s21, s22")
    A("v_lshlrev_b32 v5, 3, v2")
    A("s_waitcnt lgkmcnt(0)")
    A("s_mov_b32 s8, s6")
    A("s_and_b32 s9, s7, 0xffff")
    A("s_mov_b32 s10, 0x200000")
    A("s_mov_b32 s11, 0x20000")
    A("s_mov_b32 s12, s4")
    A("s_and_b32 s13, s5, 0xffff")
    A("s_mov_b32 s14, 16384")
    A("s_mov_b32 s15, 0x20000")
    ML = 8; OO = 24
    for i in range(4):
        A(f"buffer_load_dwordx4 {vr(ML+4*i,4)}, v4, s[8:11], s20 offen offset:{16*i}")
    for it in range(8):
        A(f"buffer_load_dwordx4 {vr(OO+4*it,4)}, v3, s[8:11], s19 offen")
        if it < 7:
            A("s_add_u32 s19, s19, 4096")
    A("s_waitcnt vmcnt(8)")
    A(f"v_max3_f32 v6, v{ML}, v{ML+2}, v{ML+4}")
    A(f"v_max3_f32 v6, v6, v{ML+6}, v{ML+8}")
    A(f"v_max3_f32 v6, v6, v{ML+10}, v{ML+12}")
    A(f"v_max_f32 v6, v6, v{ML+14}")
    A("v_mov_b32 v7, v6")
    A("s_nop 1")
    A("v_permlane32_swap_b32 v6, v7")
    A("s_nop 1")
    A("v_max_f32 v6, v6, v7")
    A("v_mov_b32 v7, v6")
    A("s_nop 1")
    A("v_permlane16_swap_b32 v6, v7")
    A("s_nop 1")
    A("v_max_f32 v6, v6, v7")
    for w in range(8):
        A(f"v_sub_f32 v{ML+2*w}, v{ML+2*w}, v6")
    for w in range(8):
        A(f"v_exp_f32 v{ML+2*w}, v{ML+2*w}")
    A("s_nop 0")
    AC = 56
    A(f"v_mul_f32 v{AC+4}, v{ML}, v{ML+1}")
    for w in range(1, 8):
        A(f"v_fmac_f32 v{AC+4}, v{ML+2*w}, v{ML+2*w+1}")
    for w in range(8):
        A(f"s_waitcnt vmcnt({7-w})")
        for i in range(4):
            if w == 0:
                A(f"v_mul_f32 v{AC+i}, v{ML}, v{OO+i}")
            else:
                A(f"v_fmac_f32 v{AC+i}, v{ML+2*w}, v{OO+4*w+i}")
    for sw in ("v_permlane32_swap_b32", "v_permlane16_swap_b32"):
        for i in range(5):
            A(f"v_mov_b32 v{AC+8+i}, v{AC+i}")
        A("s_nop 1")
        for i in range(5):
            A(f"{sw} v{AC+i}, v{AC+8+i}")
        A("s_nop 1")
        for i in range(5):
            A(f"v_add_f32 v{AC+i}, v{AC+i}, v{AC+8+i}")
    A(f"v_rcp_f32 v{AC+4}, v{AC+4}")
    A("s_nop 0")
    for i in range(4):
        A(f"v_mul_f32 v{AC+i}, v{AC+i}, v{AC+4}")
    A(f"v_cvt_pk_bf16_f32 v{AC}, v{AC}, v{AC+1}")
    A(f"v_cvt_pk_bf16_f32 v{AC+1}, v{AC+2}, v{AC+3}")
    A("v_cmp_gt_u32 vcc, 16, v0")
    A("s_and_saveexec_b64 s[24:25], vcc")
    A(f"buffer_store_dwordx2 {vr(AC,2)}, v5, s[12:15], s21 offen")
    if opt.pad2:
        A.label("L_pad2")
        A("s_sleep 1")
        A("s_memrealtime s[28:29]")
        A("s_waitcnt lgkmcnt(0)")
        A("s_sub_u32 s28, s28, s26")
        A(f"s_cmp_lt_u32 s28, {opt.pad2*100}")
        A("s_cbranch_scc1 L_pad2")
    A.label("L_cend")
    A("s_endpgm")

    def kd(name, nv, ns):
        acc = (nv + 3) // 4 * 4
        return f""".amdhsa_kernel {name}
  .amdhsa_next_free_vgpr {nv}
  .amdhsa_next_free_sgpr {ns}
  .amdhsa_accum_offset {acc}
  .amdhsa_group_segment_fixed_size 0
  .amdhsa_kernarg_size 64
  .amdhsa_user_sgpr_count 2
  .amdhsa_user_sgpr_kernarg_segment_ptr 1
  .amdhsa_system_sgpr_workgroup_id_x 1
.end_amdhsa_kernel"""
    A.raw('.section .rodata,"a"')
    A.raw(".p2align 6")
    A.raw(kd(f"{NAME}_kernel", NV, 96 if (opt.stamps or opt.pad1) else 72))
    A.raw(".p2align 6")
    A.raw(kd("attn_combine_kernel", 72, 32))
    return A.text()

if __name__ == "__main__":
    p = argparse.ArgumentParser()
    p.add_argument("--ring", type=int, default=4)
    p.add_argument("--hint", default="")
    p.add_argument("--map", type=int, default=1)
    p.add_argument("--wvmap", type=int, default=0)
    p.add_argument("--kpat", default="C")
    p.add_argument("--pad1", type=int, default=0)
    p.add_argument("--pad2", type=int, default=0)
    p.add_argument("--stamps", type=int, default=0)
    p.add_argument("-o", default="/dev/stdout")
    o = p.parse_args()
    if o.hint: o.hint = " " + o.hint
    open(o.o, "w").write(gen(o))
```

```python
import sys, argparse, struct

NAME = "standalone__paged_block_table_kv_radixattention__decode"
KV_BYTES = 3072 * 32768
SCALE = (128 ** -0.5) * 1.4426950408889634
def f2u(x): return struct.unpack("<I", struct.pack("<f", x))[0]
NINF = 0xff800000

class Asm:
    def __init__(self): self.l = []
    def __call__(self, s): self.l.append("    " + s)
    def label(self, s): self.l.append(s + ":")
    def raw(self, s): self.l.append(s)
    def text(self): return "\n".join(self.l) + "\n"

def vr(a, n): return f"v[{a}:{a+n-1}]"
def sr(a, n): return f"s[{a}:{a+n-1}]"

def gen(opt):
    A = Asm()
    hint = opt.hint
    DI = opt.DI
    LDS = 4 * 8 * 132 * 4 + 4 * 64
    header = f"""; Paged-KV (block table, shared radix prefix) GQA decode attention, split-KV + combine.
; @launch kernel={NAME}_kernel grid=(256,1,1) block=(256,1,1) lds={max(LDS, opt.lds)}
; @launch kernel=attn_combine_kernel grid=(128,1,1) block=(64,1,1) lds=0
.amdgcn_target "amdgcn-amd-amdhsa--gfx950"
.text
.globl {NAME}_kernel
.p2align 8
.type {NAME}_kernel,@function
{NAME}_kernel:"""
    A.raw(header)
    sK, sV, sQ, sBT, sWS = 8, 12, 16, 20, 24
    sCP = 28
    sCTX0, sCTX1 = 30, 31
    sH, sS, sWAVE, sW, sMASK, sLANE, sDESC, sOFF = 32, 33, 34, 35, 36, 37, 38, 39
    sN = [40, 41]; sNN = 42
    sT, sT2, sSIZE = 43, 44, 45
    sZ = [46, 47]
    sTHR = [48, 49]; sFLOOR = [50, 51]
    sMK = [52, 54]
    sQO = [56, 57]
    sEX = 58
    vK, vK2, vV, vV2, vM0, vM1, vDESC, vC, vNINF = 1, 2, 3, 4, 5, 6, 7, 8, 9
    vTOK = 10
    NM = [14, 16]; L = [15, 17]
    T = 18
    Q = [24, 28]
    O = [32, 40]
    D = [48, 52]
    X = [56, 60]
    B = [64, 72]
    RING = 80
    NV = RING + 32
    def piece(p): return vr(RING + 4 * p, 4)

    A("s_cmp_ge_u32 s2, 256")
    A("s_cbranch_scc1 L_end")
    if opt.stamps: A("s_memrealtime s[70:71]")
    A(f"s_load_dwordx2 {sr(sBT,2)}, s[0:1], 24")
    A(f"s_load_dwordx2 {sr(sQ,2)}, s[0:1], 0")
    A(f"s_load_dwordx2 {sr(sK,2)}, s[0:1], 8")
    A(f"s_load_dwordx2 {sr(sV,2)}, s[0:1], 16")
    A(f"s_load_dwordx2 {sr(sCP,2)}, s[0:1], 32")
    A(f"s_load_dwordx2 {sr(sWS,2)}, s[0:1], 56")
    t0, t1, t2, t3, t4, t5 = range(T, T + 6)
    A(f"v_lshrrev_b32 v{t0}, 6, v0")
    A("v_and_b32 v0, 63, v0")
    A(f"v_readfirstlane_b32 s{sWAVE}, v{t0}")
    A(f"s_and_b32 s{sH}, s2, 7")
    if opt.hrot:
        A(f"s_add_u32 s{sH}, s{sH}, {opt.hrot}")
        A(f"s_and_b32 s{sH}, s{sH}, 7")
    A(f"s_lshr_b32 s{sS}, s2, 3")
    A(f"s_lshl_b32 s{sW}, s{sWAVE}, 5")
    A(f"s_add_u32 s{sW}, s{sW}, s{sS}")
    for s, size in ((sBT, 16384), (sQ, 16384), (sK, KV_BYTES), (sV, KV_BYTES), (sWS, 0x200000)):
        A(f"s_mov_b32 s{s+2}, {size}")
        A(f"s_mov_b32 s{s+3}, 0x20000")
    pB, pJ, pBT, pTOK, pQ, pPH = X[0], X[0] + 1, X[0] + 2, X[0] + 3, X[1], X[1] + 1
    A(f"v_and_b32 v{pB}, 1, v0")
    A(f"v_lshrrev_b32 v{pJ}, 1, v0")
    A(f"v_lshlrev_b32 v{pBT}, 13, v{pB}")
    A(f"v_lshl_add_u32 v{pBT}, v{pJ}, 9, v{pBT}")
    A(f"s_lshl_b32 s{sT}, s{sW}, 2")
    A(f"v_and_b32 v{t0}, 15, v0")
    A(f"v_lshrrev_b32 v{t1}, 4, v0")
    A(f"v_lshrrev_b32 v{t2}, 2, v{t0}")
    A(f"v_and_b32 v{t3}, 3, v0")
    A(f"v_lshlrev_b32 v{t4}, 6, v{t1}")
    A(f"v_lshl_add_u32 v{t4}, v{t3}, 4, v{t4}")
    A(f"v_lshl_add_u32 v{pQ}, v{t2}, 8, v{t4}")
    A(f"s_lshl_b32 s{sT2}, s{sH}, 8")
    A(f"s_lshl_b32 s{sQO[0]}, s{sH}, 10")
    A(f"s_add_u32 s{sQO[1]}, s{sQO[0]}, 8192")
    A(f"v_lshl_add_u32 v{vK}, v{t2}, 13, v{t4}")
    A(f"v_add_u32 v{vK}, s{sT2}, v{vK}")
    A(f"v_add_u32 v{vK2}, 4096, v{vK}")
    A(f"v_lshlrev_b32 v{vV}, 13, v{t1}")
    A(f"v_lshl_add_u32 v{vV}, v{t0}, 4, v{vV}")
    A(f"v_add_u32 v{vV}, s{sT2}, v{vV}")
    A(f"v_add_u32 v{vV2}, 4096, v{vV}")
    A(f"s_lshl_b32 s{sOFF}, s{sW}, 15")
    A(f"s_mov_b32 s{sSIZE}, {KV_BYTES}")

    def issue(p):
        p &= 7
        i = p & 3
        if p < 4:
            A(f"buffer_load_dwordx4 {piece(p)}, v{vK if i < 2 else vK2}, {sr(sK,4)}, s{sOFF} offen offset:{2048*(i&1)}{hint}")
        else:
            A(f"buffer_load_dwordx4 {piece(p)}, v{vV if i < 2 else vV2}, {sr(sV,4)}, s{sOFF} offen offset:{2048*(i&1)}{hint}")

    A("s_waitcnt lgkmcnt(0)")
    A(f"buffer_load_dword v{pPH}, v{pBT}, {sr(sBT,4)}, s{sT} offen")
    A(f"s_load_dwordx2 s[{sCTX0}:{sCTX1}], {sr(sCP,2)}, 0")
    for b in range(2):
        A(f"buffer_load_dwordx4 {vr(Q[b],4)}, v{pQ}, {sr(sQ,4)}, s{sQO[b]} offen")
    if opt.spec:
        for p in range(DI): issue(p)
    if opt.stamps: A("s_memrealtime s[72:73]")
    for i in range(4):
        A(f"v_lshl_add_u32 v{vTOK+i}, v{t1}, 2, {i}")
    A(f"v_mov_b32 v{vC}, {f2u(SCALE):#x}")
    A(f"v_mov_b32 v{vNINF}, {NINF:#x}")
    A(f"v_and_b32 v{t4}, 1, v{t3}")
    A(f"v_lshlrev_b32 v{t4}, 4, v{t4}")
    A(f"v_mov_b32 v{t5}, 0xffff")
    A(f"v_lshlrev_b32 v{t5}, v{t4}, v{t5}")
    A(f"v_cmp_gt_u32 vcc, 2, v{t3}")
    A(f"s_lshl_b32 s{sT}, s{sW}, 4")
    A(f"v_lshlrev_b32 v{pTOK}, 11, v{pJ}")
    A(f"v_cndmask_b32 v{vM0}, 0, v{t5}, vcc")
    A(f"v_xor_b32 v{vM1}, v{vM0}, v{t5}")
    A(f"v_add_u32 v{pTOK}, s{sT}, v{pTOK}")
    for b in range(2):
        for i in range(8):
            A(f"v_mov_b32 v{O[b]+i}, 0")
        A(f"v_mov_b32 v{NM[b]}, 0")
        A(f"v_mov_b32 v{L[b]}, 0")
        A(f"s_mov_b32 s{sTHR[b]}, {NINF:#x}")
        A(f"s_mov_b32 s{sFLOOR[b]}, {NINF:#x}")
    A(f"v_cmp_eq_u32 vcc, 1, v{pB}")
    A("s_waitcnt lgkmcnt(0)")
    for b, sc in enumerate((sCTX0, sCTX1)):
        A(f"s_cmp_lt_i32 s{sc}, 1")
        A(f"s_cselect_b32 s{sZ[b]}, 1, 0")
        A(f"s_cselect_b32 s{sc}, 0x8000, s{sc}")
    A(f"v_mov_b32 v{t0}, s{sCTX0}")
    A(f"v_mov_b32 v{t2}, s{sCTX1}")
    A(f"v_cndmask_b32 v{t4}, v{t0}, v{t2}, vcc")
    A(f"v_cndmask_b32 v{t2}, v{t2}, v{t0}, vcc")
    A(f"v_sub_u32 v{t4}, v{t4}, v{pTOK}")
    A(f"v_sub_u32 v{t2}, v{t2}, v{pTOK}")
    A(f"v_med3_i32 v{t4}, v{t4}, 0, 16")
    A(f"v_med3_i32 v{t2}, v{t2}, 0, 16")
    A(f"v_lshlrev_b32 v{t0}, 5, v{t4}")
    A(f"v_lshl_or_b32 v{t2}, v{t2}, 5, v{t4}")
    A(f"v_cndmask_b32 v{t4}, v{t4}, v{t0}, vcc")
    A(f"v_mov_b32 v{t0}, 0")
    A(f"v_cndmask_b32 v{t2}, v{t2}, v{t0}, vcc")
    A(f"v_cmp_gt_u32 {sr(sEX,2)}, 32, v0")
    A(f"s_waitcnt vmcnt({2 + (DI if opt.spec else 0)})")
    A(f"v_min_u32 v{pPH}, 3071, v{pPH}")
    A("s_nop 1")
    A(f"v_mov_b32_dpp v{t5}, v{pPH} quad_perm:[1,0,3,2] row_mask:0xf bank_mask:0xf")
    A(f"v_cmp_eq_u32 vcc, v{t5}, v{pPH}")
    A("s_nop 1")
    A(f"v_cndmask_b32 v{t2}, v{t4}, v{t2}, vcc")
    A(f"v_cndmask_b32 v{t2}, v{t0}, v{t2}, {sr(sEX,2)}")
    A(f"v_cmp_ne_u32 vcc, 0, v{t2}")
    A(f"v_lshl_or_b32 v{vDESC}, v{pPH}, 15, v{t2}")
    A(f"s_mov_b32 s{sT}, s{sOFF}")
    A(f"s_mov_b32 s{sMASK}, vcc_lo")

    def next_item():
        A(f"s_ff1_i32_b32 s{sLANE}, s{sMASK}")
        A(f"s_bitset0_b32 s{sMASK}, s{sLANE}")
        A(f"v_readlane_b32 s{sDESC}, v{vDESC}, s{sLANE}")
        A(f"s_and_b32 s{sOFF}, s{sDESC}, 0xffff8000")
        A(f"s_and_b32 s{sNN}, s{sDESC}, 0x3ff")
        A(f"s_cselect_b32 s{sK+2}, s{sSIZE}, 0")
        A(f"s_cselect_b32 s{sV+2}, s{sSIZE}, 0")

    next_item()
    A("s_cbranch_scc0 L_done")
    if opt.spec:
        A(f"s_cmp_eq_u32 s{sT}, s{sOFF}")
        A("s_cbranch_scc1 L_spec_ok")
        A("s_waitcnt vmcnt(0)")
    for p in range(DI): issue(p)
    if opt.spec: A.label("L_spec_ok")
    A(f"s_or_b32 s{sT}, s{sZ[0]}, s{sZ[1]}")
    A("s_cbranch_scc0 L_go")
    A(f"s_waitcnt vmcnt({DI})")
    for b in range(2):
        A(f"s_cmp_eq_u32 s{sZ[b]}, 0")
        A(f"s_cbranch_scc1 L_noz{b}")
        for i in range(4):
            A(f"v_mov_b32 v{Q[b]+i}, 0")
        A.label(f"L_noz{b}")
    A.label("L_go")
    if opt.stamps:
        A(f"s_waitcnt vmcnt({DI-1})")
        A("s_memrealtime s[74:75]")

    def kstep(i):
        K = piece(i)
        for b in range(2):
            A(f"v_mfma_f32_16x16x32_bf16 {vr(D[b],4)}, {K}, {vr(Q[b],4)}, 0")
        for b in range(2):
            A(f"v_mov_b32 v{X[b]+i}, v{NM[b]}")
        for b in range(2):
            A(f"v_cmp_gt_u32 {sr(sMK[b],2)}, s{sN[b]}, v{vTOK+i}")
        A("s_nop 2")
        for j in range(4):
            for b in range(2):
                A(f"v_fmac_f32_dpp v{X[b]+i}, v{D[b]+j}, v{vC} quad_perm:[{j},{j},{j},{j}] row_mask:0xf bank_mask:0xf")
            if j < 3: A("s_nop 0")
        for b in range(2):
            A(f"v_cndmask_b32 v{X[b]+i}, v{vNINF}, v{X[b]+i}, {sr(sMK[b],2)}")

    def softmax(b, tag):
        x = X[b]
        A(f"v_max3_f32 v{t0}, v{x}, v{x+1}, v{x+2}")
        A(f"v_max_f32 v{t0}, v{t0}, v{x+3}")
        A(f"v_cmp_lt_f32 vcc, s{sTHR[b]}, v{t0}")
        A(f"s_cbranch_vccnz L_slow{b}_{tag}")
        A.label(f"L_back{b}_{tag}")
        for i in range(4):
            A(f"v_exp_f32 v{x+i}, v{x+i}")
        A(f"v_add_f32 v{t2}, v{x}, v{x+1}")
        A(f"v_add_f32 v{t3}, v{x+2}, v{x+3}")
        for i in range(4):
            A(f"v_cvt_pk_bf16_f32 v{x+i}, v{x+i}, v{x+i}")
        A(f"v_add_f32 v{t2}, v{t2}, v{t3}")
        for i in range(4):
            A(f"v_and_b32 v{B[b]+2*i}, v{x+i}, v{vM0}")
            A(f"v_and_b32 v{B[b]+2*i+1}, v{x+i}, v{vM1}")
        A(f"v_add_f32 v{L[b]}, v{L[b]}, v{t2}")

    def slow(b, tag):
        x = X[b]
        A.label(f"L_slow{b}_{tag}")
        A(f"v_mov_b32 v{t1}, v{t0}")
        A("s_nop 1")
        A(f"v_permlane32_swap_b32 v{t0}, v{t1}")
        A("s_nop 1")
        A(f"v_max_f32 v{t0}, v{t0}, v{t1}")
        A(f"v_mov_b32 v{t1}, v{t0}")
        A("s_nop 1")
        A(f"v_permlane16_swap_b32 v{t0}, v{t1}")
        A("s_nop 1")
        A(f"v_max3_f32 v{t0}, v{t0}, v{t1}, s{sFLOOR[b]}")
        A(f"v_max_f32 v{t1}, 0, v{t0}")
        A(f"v_exp_f32 v{t1}, -v{t1}")
        A(f"v_sub_f32 v{NM[b]}, v{NM[b]}, v{t0}")
        for i in range(4):
            A(f"v_sub_f32 v{x+i}, v{x+i}, v{t0}")
        for i in range(8):
            A(f"v_mul_f32 v{O[b]+i}, v{t1}, v{O[b]+i}")
        A(f"v_mul_f32 v{L[b]}, v{t1}, v{L[b]}")
        A(f"s_mov_b32 s{sTHR[b]}, {f2u(8.0):#x}")
        A(f"s_mov_b32 s{sFLOOR[b]}, 0")
        A(f"s_branch L_back{b}_{tag}")

    def pv(b, i):
        V = RING + 16 + 4 * i
        A(f"v_mfma_f32_16x16x16_bf16 {vr(O[b],4)}, {vr(V,2)}, {vr(B[b]+2*i,2)}, {vr(O[b],4)}")
        A(f"v_mfma_f32_16x16x16_bf16 {vr(O[b]+4,4)}, {vr(V+2,2)}, {vr(B[b]+2*i,2)}, {vr(O[b]+4,4)}")

    def body(tag, waits):
        A.label(f"L_body_{tag}")
        A(f"s_and_b32 s{sN[0]}, s{sNN}, 31")
        A(f"s_lshr_b32 s{sN[1]}, s{sNN}, 5")
        for x in range(8):
            A(f"s_waitcnt vmcnt({waits[x]})")
            issue(x + DI)
            if x + DI == 7: next_item()
            if x < 4:
                kstep(x)
                if x == 3: softmax(0, tag)
            else:
                i = x - 4
                if i == 0:
                    pv(0, 0)
                    softmax(1, tag)
                    A("s_nop 0")
                    pv(1, 0)
                else:
                    pv(0, i); pv(1, i)

    waits = [int(c) - 1 for c in opt.D] if len(opt.D) == 8 else [int(opt.D) - 1] * 8
    assert all(w <= DI - 1 for w in waits)
    if opt.tail:
        twaits = [int(c) - 1 for c in opt.TD] if len(opt.TD) == 8 else [int(opt.TD) - 1] * 8
        A.label("L_loop")
        A(f"s_bcnt1_i32_b32 s{sT}, s{sMASK}")
        A(f"s_cmp_lt_u32 s{sT}, {opt.tail}")
        A("s_cbranch_scc1 L_body_t")
        body("m", waits)
        A("s_branch L_loop")
        slow(0, "m"); slow(1, "m")
        slow(0, "t"); slow(1, "t")
        body("t", twaits)
        A(f"s_cmp_lg_u32 s{sNN}, 0")
        A("s_cbranch_scc1 L_body_t")
    else:
        A("s_branch L_body_m")
        slow(0, "m"); slow(1, "m")
        body("m", waits)
        A(f"s_cmp_lg_u32 s{sNN}, 0")
        A("s_cbranch_scc1 L_body_m")

    A.label("L_done")
    if opt.stamps: A("s_memrealtime s[76:77]")
    for b in range(2):
        A(f"s_cmp_eq_u32 s{sFLOOR[b]}, 0")
        A(f"s_cselect_b32 s{sT}, 0, {f2u(-1e30):#x}")
        A(f"v_sub_f32 v{NM[b]}, s{sT}, v{NM[b]}")
    for b in range(2):
        A(f"v_mov_b32 v{T+2*b}, v{L[b]}")
    A("s_nop 1")
    for b in range(2):
        A(f"v_permlane32_swap_b32 v{L[b]}, v{T+2*b}")
    A("s_nop 1")
    for b in range(2):
        A(f"v_add_f32 v{L[b]}, v{L[b]}, v{T+2*b}")
        A(f"v_mov_b32 v{T+2*b}, v{L[b]}")
    A("s_nop 1")
    for b in range(2):
        A(f"v_permlane16_swap_b32 v{L[b]}, v{T+2*b}")
    A("s_nop 1")
    for b in range(2):
        A(f"v_add_f32 v{L[b]}, v{L[b]}, v{T+2*b}")
    MLB = 4 * 8 * 132 * 4
    e0, e1, e2, e3, e4, e5 = 1, 2, 3, 4, 5, 6
    A(f"v_bfe_u32 v{e0}, v0, 2, 2")
    A(f"v_lshrrev_b32 v{e1}, 4, v0")
    A(f"v_and_b32 v{e2}, 3, v0")
    A(f"s_lshl_b32 s{sT}, s{sWAVE}, 3")
    A(f"v_add_u32 v{e0}, s{sT}, v{e0}")
    A(f"v_lshlrev_b32 v{e3}, 3, v{e0}")
    A(f"v_add_u32 v{e3}, {MLB}, v{e3}")
    A(f"v_mul_u32_u24 v{e4}, 132, v{e0}")
    A(f"v_lshl_add_u32 v{e4}, v{e1}, 5, v{e4}")
    A(f"v_add_u32 v{e4}, v{e4}, v{e2}")
    A(f"v_lshlrev_b32 v{e4}, 2, v{e4}")
    A(f"v_add_u32 v{e5}, {4*132*4}, v{e4}")
    A(f"ds_write_b64 v{e3}, {vr(NM[0],2)}")
    A(f"ds_write_b64 v{e3}, {vr(NM[1],2)} offset:32")
    for b in range(2):
        for i in range(4):
            A(f"ds_write2_b32 v{e4+b}, v{O[b]+i}, v{O[b]+4+i} offset0:{8*i} offset1:{8*i+4}")
    A(f"s_lshl_b32 s{sT}, s{sWAVE}, 1")
    A("v_lshrrev_b32 v7, 5, v0")
    A(f"v_add_u32 v7, s{sT}, v7")
    A("v_and_b32 v8, 31, v0")
    A("v_lshlrev_b32 v9, 3, v7")
    A(f"v_add_u32 v9, {MLB}, v9")
    A("v_mul_u32_u24 v10, 528, v7")
    A("v_lshl_add_u32 v10, v8, 4, v10")
    A(f"s_lshl_b32 s{sT}, s{sH}, 5")
    A(f"s_add_u32 s{sT}, s{sT}, s{sS}")
    A(f"s_lshl_b32 s{sT}, s{sT}, 12")
    A("v_lshlrev_b32 v11, 9, v7")
    A("v_lshl_add_u32 v11, v8, 4, v11")
    A(f"s_lshl_b32 s{sT2}, s{sH}, 11")
    A(f"s_lshl_b32 s{sLANE}, s{sS}, 3")
    A(f"s_add_u32 s{sT2}, s{sT2}, s{sLANE}")
    A(f"s_add_u32 s{sT2}, s{sT2}, 0x100000")
    A("v_lshlrev_b32 v12, 8, v7")
    A("s_waitcnt vmcnt(0) lgkmcnt(0)")
    A("s_barrier")
    if opt.stamps: A("s_memrealtime s[78:79]")
    ML = 24
    OO = 48
    S = 64
    for w in range(4):
        A(f"ds_read_b64 {vr(ML+2*w,2)}, v9 offset:{64*w}")
    for w in range(4):
        A(f"ds_read_b128 {vr(OO+4*w,4)}, v10 offset:{4224*w}")
    A("v_cmp_eq_u32 vcc, 0, v8")
    A("s_waitcnt lgkmcnt(4)")
    A(f"v_max3_f32 v14, v{ML}, v{ML+2}, v{ML+4}")
    A(f"v_max_f32 v14, v14, v{ML+6}")
    for w in range(4):
        A(f"v_sub_f32 v{ML+2*w}, v{ML+2*w}, v14")
    for w in range(4):
        A(f"v_exp_f32 v{ML+2*w}, v{ML+2*w}")
    A("s_nop 0")
    A(f"v_mul_f32 v15, v{ML}, v{ML+1}")
    for w in range(1, 4):
        A(f"v_fmac_f32 v15, v{ML+2*w}, v{ML+2*w+1}")
    A("s_waitcnt lgkmcnt(0)")
    for i in range(4):
        A(f"v_mul_f32 v{S+i}, v{ML}, v{OO+i}")
    for w in range(1, 4):
        for i in range(4):
            A(f"v_fmac_f32 v{S+i}, v{ML+2*w}, v{OO+4*w+i}")
    A(f"buffer_store_dwordx4 {vr(S,4)}, v11, {sr(sWS,4)}, s{sT} offen")
    A(f"s_and_saveexec_b64 {sr(sEX,2)}, vcc")
    A(f"buffer_store_dwordx2 v[14:15], v12, {sr(sWS,4)}, s{sT2} offen")
    if opt.stamps:
        A("s_waitcnt vmcnt(0)")
        A("s_memrealtime s[80:81]")
        A("s_mov_b64 exec, -1")
        A("s_waitcnt lgkmcnt(0)")
        A(f"s_add_u32 s84, s{sWS}, 0x4000000")
        A(f"s_addc_u32 s85, s{sWS+1}, 0")
        A("s_and_b32 s85, s85, 0xffff")
        A("s_mov_b32 s86, 0x100000")
        A("s_mov_b32 s87, 0x20000")
        A("s_lshl_b32 s88, s2, 2")
        A(f"s_add_u32 s88, s88, s{sWAVE}")
        A("s_mul_i32 s88, s88, 48")
        for j in range(6):
            A(f"v_mov_b32 v0, s{70+2*j}")
            A(f"v_mov_b32 v1, s{71+2*j}")
            A("v_mov_b32 v2, 0")
            A("s_mov_b64 exec, 1")
            A(f"buffer_store_dwordx2 v[0:1], v2, s[84:87], s88 offen offset:{8*j}")
            A("s_waitcnt vmcnt(0)")
    A.label("L_end")
    A("s_endpgm")

    A.raw(""".globl attn_combine_kernel
.p2align 8
.type attn_combine_kernel,@function
attn_combine_kernel:""")
    A("s_cmp_ge_u32 s2, 128")
    A("s_cbranch_scc1 L_cend")
    A("s_load_dwordx2 s[12:13], s[0:1], 40")
    A("s_load_dwordx2 s[8:9], s[0:1], 56")
    A("s_lshr_b32 s16, s2, 4")
    A("s_bfe_u32 s17, s2, 0x30001")
    A("s_and_b32 s18, s2, 1")
    A("v_lshrrev_b32 v1, 4, v0")
    A("v_and_b32 v2, 15, v0")
    A("v_lshlrev_b32 v3, 15, v1")
    A("v_lshl_add_u32 v3, v2, 4, v3")
    A("s_lshl_b32 s19, s16, 17")
    A("s_lshl_b32 s20, s17, 9")
    A("s_add_u32 s19, s19, s20")
    A("s_lshl_b32 s20, s18, 8")
    A("s_add_u32 s19, s19, s20")
    A("s_lshl_b32 s20, s16, 3")
    A("s_add_u32 s20, s20, s17")
    A("s_lshl_b32 s20, s20, 8")
    A("s_add_u32 s20, s20, 0x100000")
    A("v_lshlrev_b32 v4, 6, v1")
    A("s_lshr_b32 s21, s17, 2")
    A("s_lshl_b32 s21, s21, 5")
    A("s_lshl_b32 s22, s16, 2")
    A("s_add_u32 s21, s21, s22")
    A("s_and_b32 s22, s17, 3")
    A("s_add_u32 s21, s21, s22")
    A("s_lshl_b32 s21, s21, 8")
    A("s_lshl_b32 s22, s18, 7")
    A("s_add_u32 s21, s21, s22")
    A("v_lshlrev_b32 v5, 3, v2")
    A("s_mov_b32 s10, 0x200000")
    A("s_mov_b32 s11, 0x20000")
    A("s_mov_b32 s14, 16384")
    A("s_mov_b32 s15, 0x20000")
    A("s_waitcnt lgkmcnt(0)")
    ML = 8; OO = 24
    for i in range(4):
        A(f"buffer_load_dwordx4 {vr(ML+4*i,4)}, v4, s[8:11], s20 offen offset:{16*i}")
    for it in range(8):
        A(f"buffer_load_dwordx4 {vr(OO+4*it,4)}, v3, s[8:11], s19 offen")
        if it < 7:
            A("s_add_u32 s19, s19, 4096")
    A("s_waitcnt vmcnt(8)")
    A(f"v_max3_f32 v6, v{ML}, v{ML+2}, v{ML+4}")
    A(f"v_max3_f32 v6, v6, v{ML+6}, v{ML+8}")
    A(f"v_max3_f32 v6, v6, v{ML+10}, v{ML+12}")
    A(f"v_max_f32 v6, v6, v{ML+14}")
    A("v_mov_b32 v7, v6")
    A("s_nop 1")
    A("v_permlane32_swap_b32 v6, v7")
    A("s_nop 1")
    A("v_max_f32 v6, v6, v7")
    A("v_mov_b32 v7, v6")
    A("s_nop 1")
    A("v_permlane16_swap_b32 v6, v7")
    A("s_nop 1")
    A("v_max_f32 v6, v6, v7")
    for w in range(8):
        A(f"v_sub_f32 v{ML+2*w}, v{ML+2*w}, v6")
    for w in range(8):
        A(f"v_exp_f32 v{ML+2*w}, v{ML+2*w}")
    A("s_nop 0")
    AC = 56
    A(f"v_mul_f32 v{AC+4}, v{ML}, v{ML+1}")
    for w in range(1, 8):
        A(f"v_fmac_f32 v{AC+4}, v{ML+2*w}, v{ML+2*w+1}")
    for w in range(8):
        A(f"s_waitcnt vmcnt({7-w})")
        for i in range(4):
            if w == 0:
                A(f"v_mul_f32 v{AC+i}, v{ML}, v{OO+i}")
            else:
                A(f"v_fmac_f32 v{AC+i}, v{ML+2*w}, v{OO+4*w+i}")
    for sw in ("v_permlane32_swap_b32", "v_permlane16_swap_b32"):
        for i in range(5):
            A(f"v_mov_b32 v{AC+8+i}, v{AC+i}")
        A("s_nop 1")
        for i in range(5):
            A(f"{sw} v{AC+i}, v{AC+8+i}")
        A("s_nop 1")
        for i in range(5):
            A(f"v_add_f32 v{AC+i}, v{AC+i}, v{AC+8+i}")
    A(f"v_rcp_f32 v{AC+4}, v{AC+4}")
    A("s_nop 0")
    for i in range(4):
        A(f"v_mul_f32 v{AC+i}, v{AC+i}, v{AC+4}")
    A(f"v_cvt_pk_bf16_f32 v{AC}, v{AC}, v{AC+1}")
    A(f"v_cvt_pk_bf16_f32 v{AC+1}, v{AC+2}, v{AC+3}")
    A("v_cmp_gt_u32 vcc, 16, v0")
    A("s_and_saveexec_b64 s[24:25], vcc")
    A(f"buffer_store_dwordx2 {vr(AC,2)}, v5, s[12:15], s21 offen")
    A.label("L_cend")
    A("s_endpgm")

    def kd(name, nv, ns):
        acc = (nv + 3) // 4 * 4
        return f""".amdhsa_kernel {name}
  .amdhsa_next_free_vgpr {nv}
  .amdhsa_next_free_sgpr {ns}
  .amdhsa_accum_offset {acc}
  .amdhsa_group_segment_fixed_size 0
  .amdhsa_kernarg_size 64
  .amdhsa_user_sgpr_count 2
  .amdhsa_user_sgpr_kernarg_segment_ptr 1
  .amdhsa_system_sgpr_workgroup_id_x 1
.end_amdhsa_kernel"""
    A.raw('.section .rodata,"a"')
    A.raw(".p2align 6")
    A.raw(kd(f"{NAME}_kernel", NV, 96 if opt.stamps else 64))
    A.raw(".p2align 6")
    A.raw(kd("attn_combine_kernel", 72, 32))
    return A.text()

if __name__ == "__main__":
    p = argparse.ArgumentParser()
    p.add_argument("--DI", type=int, default=7)
    p.add_argument("--D", default="5")
    p.add_argument("--TD", default="7")
    p.add_argument("--tail", type=int, default=0)
    p.add_argument("--spec", type=int, default=1)
    p.add_argument("--hint", default="nt")
    p.add_argument("--hrot", type=int, default=0)
    p.add_argument("--lds", type=int, default=0)
    p.add_argument("--stamps", type=int, default=0)
    p.add_argument("-o", default="/dev/stdout")
    o = p.parse_args()
    if o.hint: o.hint = " " + o.hint
    open(o.o, "w").write(gen(o))
```

```python
import sys, argparse, struct

NAME = "standalone__paged_block_table_kv_radixattention__decode"
KV_BYTES = 3072 * 32768
SCALE = (128 ** -0.5) * 1.4426950408889634
def f2u(x): return struct.unpack("<I", struct.pack("<f", x))[0]
NINF = 0xff800000
ML_OFF = 0x100000
CNT_OFF = 0x120000

class Asm:
    def __init__(self): self.l = []
    def __call__(self, s): self.l.append("    " + s)
    def label(self, s): self.l.append(s + ":")
    def raw(self, s): self.l.append(s)
    def text(self): return "\n".join(self.l) + "\n"

def vr(a, n): return f"v[{a}:{a+n-1}]"
def sr(a, n): return f"s[{a}:{a+n-1}]"

def gen(opt):
    A = Asm()
    hint = opt.hint
    DI = 7
    MLB = 4 * 8 * 132 * 4
    TAB = MLB + 256
    FLAG = TAB + 129 * 4
    LDS = TAB + 130 * 4
    header = f"""; Paged-KV (block table, shared radix prefix) GQA decode attention: split-KV with in-kernel combine.
; @launch grid=(256,1,1) block=(320,1,1) lds={max(LDS, opt.lds)}
.amdgcn_target "amdgcn-amd-amdhsa--gfx950"
.text
.globl {NAME}_kernel
.p2align 8
.type {NAME}_kernel,@function
{NAME}_kernel:"""
    A.raw(header)
    sK, sV, sQ, sBT, sWS = 8, 12, 16, 20, 24
    sCP = 28
    sCTX = [30, 31]
    sH, sS, sWAVE, sW, sMASK, sLANE, sDESC, sOFF = 32, 33, 34, 35, 36, 37, 38, 39
    sN = [40, 41]; sNN = 42
    sT, sT2, sSIZE = 43, 44, 45
    sZ = [46, 47]
    sTHR = [48, 49]; sFLOOR = [50, 51]
    sMK = [52, 54]
    sQO = [56, 57]
    sEX = 58
    sG, sCNT = 60, 61
    sP0 = [62, 63]
    sOUT, sDBG = 64, 4
    vK, vK2, vV, vV2, vM0, vM1, vDESC, vC, vNINF = 1, 2, 3, 4, 5, 6, 7, 8, 9
    vTOK = 10
    NM = [14, 16]; L = [15, 17]
    T = 18
    Q = [24, 28]
    O = [32, 40]
    D = [48, 52]
    X = [56, 60]
    B = [64, 72]
    RING = 80
    vTICK, vZERO, vPRB = RING + 32, RING + 33, RING + 34
    NV = RING + 35
    sNEED, sDEEP, sPEND = 68, 69, 3
    def piece(p): return vr(RING + 4 * p, 4)
    t0, t1, t2, t3, t4, t5 = range(T, T + 6)

    A("s_cmp_ge_u32 s2, 256")
    A("s_cbranch_scc1 L_end")
    if opt.stamps: A("s_memrealtime s[70:71]")
    A(f"s_load_dwordx2 {sr(sBT,2)}, s[0:1], 24")
    A(f"s_load_dwordx2 {sr(sQ,2)}, s[0:1], 0")
    A(f"s_load_dwordx2 {sr(sK,2)}, s[0:1], 8")
    A(f"s_load_dwordx2 {sr(sV,2)}, s[0:1], 16")
    A(f"s_load_dwordx2 {sr(sCP,2)}, s[0:1], 32")
    A(f"s_load_dwordx2 {sr(sWS,2)}, s[0:1], 56")
    A(f"v_lshrrev_b32 v{t0}, 6, v0")
    A("v_and_b32 v0, 63, v0")
    A(f"v_readfirstlane_b32 s{sWAVE}, v{t0}")
    A(f"s_bfe_u32 s{sH}, s2, 0x30003")
    if opt.hrot:
        A(f"s_add_u32 s{sH}, s{sH}, {opt.hrot}")
        A(f"s_and_b32 s{sH}, s{sH}, 7")
    A(f"s_lshr_b32 s{sG}, s2, 6")
    A(f"s_lshl_b32 s{sS}, s{sG}, 3")
    A(f"s_and_b32 s{sT}, s2, 7")
    A(f"s_add_u32 s{sS}, s{sS}, s{sT}")
    for s, size in ((sBT, 16384), (sWS, 0x200000)):
        A(f"s_mov_b32 s{s+2}, {size}")
        A(f"s_mov_b32 s{s+3}, 0x20000")
    A(f"s_cmp_eq_u32 s{sWAVE}, 4")
    A("s_cbranch_scc1 L_service")
    if opt.wmap == 0:
        A(f"s_lshl_b32 s{sW}, s{sWAVE}, 5")
        A(f"s_add_u32 s{sW}, s{sW}, s{sS}")
    elif opt.wmap == 1:
        A(f"s_lshl_b32 s{sW}, s{sS}, 2")
        A(f"s_add_u32 s{sW}, s{sW}, s{sWAVE}")
    elif opt.wmap == 2:
        A(f"s_and_b32 s{sW}, s2, 7")
        A(f"s_lshl_b32 s{sW}, s{sW}, 2")
        A(f"s_add_u32 s{sW}, s{sW}, s{sG}")
        A(f"s_lshl_b32 s{sW}, s{sW}, 2")
        A(f"s_add_u32 s{sW}, s{sW}, s{sWAVE}")
    elif opt.wmap == 3:
        A(f"s_lshl_b32 s{sW}, s{sWAVE}, 5")
        A(f"s_add_u32 s{sW}, s{sW}, s{sS}")
        A(f"s_lshl_b32 s{sT}, s{sH}, 4")
        A(f"s_add_u32 s{sW}, s{sW}, s{sT}")
        A(f"s_and_b32 s{sW}, s{sW}, 127")
    for s, size in ((sQ, 16384), (sK, KV_BYTES), (sV, KV_BYTES)):
        A(f"s_mov_b32 s{s+2}, {size}")
        A(f"s_mov_b32 s{s+3}, 0x20000")
    pB, pJ, pBT, pTOK, pQ, pPH = X[0], X[0] + 1, X[0] + 2, X[0] + 3, X[1], X[1] + 1
    A(f"v_and_b32 v{pB}, 1, v0")
    A(f"v_lshrrev_b32 v{pJ}, 1, v0")
    A(f"v_lshlrev_b32 v{pBT}, 13, v{pB}")
    A(f"v_lshl_add_u32 v{pBT}, v{pJ}, 9, v{pBT}")
    A(f"s_lshl_b32 s{sT}, s{sW}, 2")
    A(f"v_and_b32 v{t0}, 15, v0")
    A(f"v_lshrrev_b32 v{t1}, 4, v0")
    A(f"v_lshrrev_b32 v{t2}, 2, v{t0}")
    A(f"v_and_b32 v{t3}, 3, v0")
    A(f"v_lshlrev_b32 v{t4}, 6, v{t1}")
    A(f"v_lshl_add_u32 v{t4}, v{t3}, 4, v{t4}")
    A(f"v_lshl_add_u32 v{pQ}, v{t2}, 8, v{t4}")
    A(f"s_lshl_b32 s{sT2}, s{sH}, 8")
    A(f"s_lshl_b32 s{sQO[0]}, s{sH}, 10")
    A(f"s_add_u32 s{sQO[1]}, s{sQO[0]}, 8192")
    A(f"v_lshl_add_u32 v{vK}, v{t2}, 13, v{t4}")
    A(f"v_add_u32 v{vK}, s{sT2}, v{vK}")
    A(f"v_add_u32 v{vK2}, 4096, v{vK}")
    A(f"v_lshlrev_b32 v{vV}, 13, v{t1}")
    A(f"v_lshl_add_u32 v{vV}, v{t0}, 4, v{vV}")
    A(f"v_add_u32 v{vV}, s{sT2}, v{vV}")
    A(f"v_add_u32 v{vV2}, 4096, v{vV}")
    A(f"s_lshl_b32 s{sOFF}, s{sW}, 15")
    A(f"s_mov_b32 s{sSIZE}, {KV_BYTES}")
    A(f"s_mov_b32 s{sDEEP}, 0")
    A(f"s_mov_b32 s{sNEED}, 0")
    A(f"s_mov_b32 s{sPEND}, 0")
    if opt.hm:
        assert not opt.probe
        hm = [int(x, 2) for x in opt.hm.split(",")]
        assert len(hm) == 4
        word = sum(m << (8 * i) for i, m in enumerate(hm))
        A(f"s_lshl_b32 s{sPEND}, s{sH}, 3")
        A(f"s_lshr_b32 s{sPEND}, {word:#x}, s{sPEND}")
    if opt.stamps in (2, 4): A("s_mov_b32 s90, 0")

    def issue(p):
        p &= 7
        i = p & 3
        if p < 4:
            A(f"buffer_load_dwordx4 {piece(p)}, v{vK if i < 2 else vK2}, {sr(sK,4)}, s{sOFF} offen offset:{2048*(i&1)}{hint}")
        else:
            A(f"buffer_load_dwordx4 {piece(p)}, v{vV if i < 2 else vV2}, {sr(sV,4)}, s{sOFF} offen offset:{2048*(i&1)}{hint}")

    def ctx_setup(zflags):
        for b in range(2):
            A(f"s_cmp_lt_i32 s{sCTX[b]}, 1")
            if zflags: A(f"s_cselect_b32 s{sZ[b]}, 1, 0")
            A(f"s_cselect_b32 s{sCTX[b]}, 0x8000, s{sCTX[b]}")
            A(f"s_min_u32 s{sCTX[b]}, s{sCTX[b]}, 0x8000")
        if not opt.dyn:
            for b in range(2): A(f"s_mov_b32 s{sP0[b]}, 0x8000")
            return
        for b in range(2):
            A(f"s_and_b32 s{sP0[b]}, s{sCTX[b]}, 0xf800")
        A(f"s_add_u32 s{sT}, s{sCTX[0]}, s{sCTX[1]}")
        A(f"s_sub_u32 s{sT}, s{sT}, s{sP0[0]}")
        A(f"s_sub_u32 s{sT}, s{sT}, s{sP0[1]}")
        A(f"s_cmp_lt_u32 s{sT}, {opt.rt * 16}")
        A(f"s_cselect_b32 s{sT}, 2048, 0")
        A(f"s_cmp_lt_u32 s{sP0[0]}, s{sP0[1]}")
        A(f"s_cselect_b32 s{sT2}, 0, s{sT}")
        A(f"s_cselect_b32 s{sT}, s{sT}, 0")
        A(f"s_sub_i32 s{sP0[0]}, s{sP0[0]}, s{sT2}")
        A(f"s_sub_i32 s{sP0[1]}, s{sP0[1]}, s{sT}")
        A(f"s_max_i32 s{sT}, s{sP0[0]}, s{sP0[1]}")
        A(f"s_cmp_lt_i32 s{sT}, 4096")
        for b in range(2):
            A(f"s_cselect_b32 s{sP0[b]}, 0x8000, s{sP0[b]}")

    A("s_waitcnt lgkmcnt(0)")
    A(f"buffer_load_dword v{pPH}, v{pBT}, {sr(sBT,4)}, s{sT} offen")
    A(f"s_load_dwordx2 s[{sCTX[0]}:{sCTX[1]}], {sr(sCP,2)}, 0")
    for b in range(2):
        A(f"buffer_load_dwordx4 {vr(Q[b],4)}, v{pQ}, {sr(sQ,4)}, s{sQO[b]} offen")
    for p in range(DI): issue(p)
    if opt.stamps: A("s_memrealtime s[72:73]")
    for i in range(4):
        A(f"v_lshl_add_u32 v{vTOK+i}, v{t1}, 2, {i}")
    A(f"v_mov_b32 v{vC}, {f2u(SCALE):#x}")
    A(f"v_mov_b32 v{vNINF}, {NINF:#x}")
    A(f"v_mov_b32 v{vTICK}, 128")
    A(f"v_mov_b32 v{vZERO}, 0")
    A(f"v_and_b32 v{t4}, 1, v{t3}")
    A(f"v_lshlrev_b32 v{t4}, 4, v{t4}")
    A(f"v_mov_b32 v{t5}, 0xffff")
    A(f"v_lshlrev_b32 v{t5}, v{t4}, v{t5}")
    A(f"v_cmp_gt_u32 vcc, 2, v{t3}")
    A(f"s_lshl_b32 s{sT}, s{sW}, 4")
    A(f"v_lshlrev_b32 v{pTOK}, 11, v{pJ}")
    A(f"v_cndmask_b32 v{vM0}, 0, v{t5}, vcc")
    A(f"v_xor_b32 v{vM1}, v{vM0}, v{t5}")
    A(f"v_add_u32 v{pTOK}, s{sT}, v{pTOK}")
    for b in range(2):
        for i in range(8):
            A(f"v_mov_b32 v{O[b]+i}, 0")
        A(f"v_mov_b32 v{NM[b]}, 0")
        A(f"v_mov_b32 v{L[b]}, 0")
        A(f"s_mov_b32 s{sTHR[b]}, {NINF:#x}")
        A(f"s_mov_b32 s{sFLOOR[b]}, {NINF:#x}")
    A(f"v_cmp_eq_u32 vcc, 1, v{pB}")
    A(f"s_lshr_b32 s{sCNT}, s2, 3")
    A(f"s_lshl_b32 s{sCNT}, s{sCNT}, 8")
    A(f"s_add_u32 s{sCNT}, s{sCNT}, {CNT_OFF:#x}")
    A("s_barrier")
    A("s_waitcnt lgkmcnt(0)")
    ctx_setup(True)
    for b in range(2):
        A(f"s_min_u32 s{sCTX[b]}, s{sCTX[b]}, s{sP0[b]}")
    A(f"v_mov_b32 v{t0}, s{sCTX[0]}")
    A(f"v_mov_b32 v{t2}, s{sCTX[1]}")
    A(f"v_cndmask_b32 v{t4}, v{t0}, v{t2}, vcc")
    A(f"v_cndmask_b32 v{t2}, v{t2}, v{t0}, vcc")
    A(f"v_sub_u32 v{t4}, v{t4}, v{pTOK}")
    A(f"v_sub_u32 v{t2}, v{t2}, v{pTOK}")
    A(f"v_med3_i32 v{t4}, v{t4}, 0, 16")
    A(f"v_med3_i32 v{t2}, v{t2}, 0, 16")
    A(f"v_lshlrev_b32 v{t0}, 5, v{t4}")
    A(f"v_lshl_or_b32 v{t2}, v{t2}, 5, v{t4}")
    A(f"v_cndmask_b32 v{t4}, v{t4}, v{t0}, vcc")
    A(f"v_cndmask_b32 v{t2}, v{t2}, v{vZERO}, vcc")
    A(f"v_cmp_gt_u32 {sr(sEX,2)}, 32, v0")
    A(f"s_waitcnt vmcnt({2 + DI})")
    A(f"v_min_u32 v{pPH}, 3071, v{pPH}")
    A("s_nop 1")
    A(f"v_mov_b32_dpp v{t5}, v{pPH} quad_perm:[1,0,3,2] row_mask:0xf bank_mask:0xf")
    A(f"v_cmp_eq_u32 vcc, v{t5}, v{pPH}")
    A("s_nop 1")
    A(f"v_cndmask_b32 v{t2}, v{t4}, v{t2}, vcc")
    A(f"v_cndmask_b32 v{t2}, v{vZERO}, v{t2}, {sr(sEX,2)}")
    A(f"v_cmp_ne_u32 vcc, 0, v{t2}")
    A(f"v_lshl_or_b32 v{vDESC}, v{pPH}, 15, v{t2}")
    A(f"s_mov_b32 s{sT}, s{sOFF}")
    A(f"s_mov_b32 s{sMASK}, vcc_lo")

    def static_pick():
        A(f"s_ff1_i32_b32 s{sLANE}, s{sMASK}")
        A(f"s_bitset0_b32 s{sMASK}, s{sLANE}")
        A(f"v_readlane_b32 s{sDESC}, v{vDESC}, s{sLANE}")
    def unpack():
        A(f"s_and_b32 s{sOFF}, s{sDESC}, 0xffff8000")
        A(f"s_and_b32 s{sNN}, s{sDESC}, 0x3ff")
        A(f"s_cselect_b32 s{sK+2}, s{sSIZE}, 0")
        A(f"s_cselect_b32 s{sV+2}, s{sSIZE}, 0")

    static_pick(); unpack()
    A("s_cbranch_scc0 L_done")
    A(f"s_cmp_eq_u32 s{sT}, s{sOFF}")
    A("s_cbranch_scc1 L_spec_ok")
    A("s_waitcnt vmcnt(0)")
    for p in range(DI): issue(p)
    A.label("L_spec_ok")
    A(f"s_or_b32 s{sT}, s{sZ[0]}, s{sZ[1]}")
    A("s_cbranch_scc0 L_go")
    A(f"s_waitcnt vmcnt({DI})")
    for b in range(2):
        A(f"s_cmp_eq_u32 s{sZ[b]}, 0")
        A(f"s_cbranch_scc1 L_noz{b}")
        for i in range(4):
            A(f"v_mov_b32 v{Q[b]+i}, 0")
        A.label(f"L_noz{b}")
    A.label("L_go")
    if opt.stamps:
        A(f"s_waitcnt vmcnt({DI-1})")
        A("s_memrealtime s[74:75]")
    A("s_branch L_body")

    def kstep(i):
        K = piece(i)
        for b in range(2):
            A(f"v_mfma_f32_16x16x32_bf16 {vr(D[b],4)}, {K}, {vr(Q[b],4)}, 0")
        for b in range(2):
            A(f"v_mov_b32 v{X[b]+i}, v{NM[b]}")
        for b in range(2):
            A(f"v_cmp_gt_u32 {sr(sMK[b],2)}, s{sN[b]}, v{vTOK+i}")
        A("s_nop 2")
        for j in range(4):
            for b in range(2):
                A(f"v_fmac_f32_dpp v{X[b]+i}, v{D[b]+j}, v{vC} quad_perm:[{j},{j},{j},{j}] row_mask:0xf bank_mask:0xf")
            if j < 3: A("s_nop 0")
        for b in range(2):
            A(f"v_cndmask_b32 v{X[b]+i}, v{vNINF}, v{X[b]+i}, {sr(sMK[b],2)}")

    def softmax(b):
        x = X[b]
        A(f"v_max3_f32 v{t0}, v{x}, v{x+1}, v{x+2}")
        A(f"v_max_f32 v{t0}, v{t0}, v{x+3}")
        A(f"v_cmp_lt_f32 vcc, s{sTHR[b]}, v{t0}")
        A(f"s_cbranch_vccnz L_slow{b}")
        A.label(f"L_back{b}")
        for i in range(4):
            A(f"v_exp_f32 v{x+i}, v{x+i}")
        A(f"v_add_f32 v{t2}, v{x}, v{x+1}")
        A(f"v_add_f32 v{t3}, v{x+2}, v{x+3}")
        for i in range(4):
            A(f"v_cvt_pk_bf16_f32 v{x+i}, v{x+i}, v{x+i}")
        A(f"v_add_f32 v{t2}, v{t2}, v{t3}")
        for i in range(4):
            A(f"v_and_b32 v{B[b]+2*i}, v{x+i}, v{vM0}")
            A(f"v_and_b32 v{B[b]+2*i+1}, v{x+i}, v{vM1}")
        A(f"v_add_f32 v{L[b]}, v{L[b]}, v{t2}")

    def slow(b):
        x = X[b]
        A.label(f"L_slow{b}")
        A(f"v_mov_b32 v{t1}, v{t0}")
        A("s_nop 1")
        A(f"v_permlane32_swap_b32 v{t0}, v{t1}")
        A("s_nop 1")
        A(f"v_max_f32 v{t0}, v{t0}, v{t1}")
        A(f"v_mov_b32 v{t1}, v{t0}")
        A("s_nop 1")
        A(f"v_permlane16_swap_b32 v{t0}, v{t1}")
        A("s_nop 1")
        A(f"v_max3_f32 v{t0}, v{t0}, v{t1}, s{sFLOOR[b]}")
        A(f"v_max_f32 v{t1}, 0, v{t0}")
        A(f"v_exp_f32 v{t1}, -v{t1}")
        A(f"v_sub_f32 v{NM[b]}, v{NM[b]}, v{t0}")
        for i in range(4):
            A(f"v_sub_f32 v{x+i}, v{x+i}, v{t0}")
        for i in range(8):
            A(f"v_mul_f32 v{O[b]+i}, v{t1}, v{O[b]+i}")
        A(f"v_mul_f32 v{L[b]}, v{t1}, v{L[b]}")
        A(f"s_mov_b32 s{sTHR[b]}, {f2u(8.0):#x}")
        A(f"s_mov_b32 s{sFLOOR[b]}, 0")
        A(f"s_branch L_back{b}")

    def pv(b, i):
        V = RING + 16 + 4 * i
        A(f"v_mfma_f32_16x16x16_bf16 {vr(O[b],4)}, {vr(V,2)}, {vr(B[b]+2*i,2)}, {vr(O[b],4)}")
        A(f"v_mfma_f32_16x16x16_bf16 {vr(O[b]+4,4)}, {vr(V+2,2)}, {vr(B[b]+2*i,2)}, {vr(O[b]+4,4)}")

    W = [int(c) - 1 for c in (opt.D if len(opt.D) == 8 else opt.D * 8)]
    WD = [int(c) - 1 for c in (opt.TD if len(opt.TD) == 8 else opt.TD * 8)]
    assert all(w <= DI - 1 for w in W + WD)
    WD[0] = max(W[0], min(WD[0], 7 - opt.astep))
    assert WD[0] <= 7 - opt.astep
    if opt.wplus:
        for x in range(opt.astep + 1, 8): WD[x] += 1
    slow(0); slow(1)
    A.label("L_dyn")
    if opt.stamps in (2, 4):
        if opt.stamps == 2: A("s_mov_b64 s[72:73], s[74:75]")
        A("s_memrealtime s[74:75]")
        A("s_add_u32 s90, s90, 100")
    A(f"v_min_u32 v{t0}, 128, v{vTICK}")
    A(f"v_lshlrev_b32 v{t0}, 2, v{t0}")
    A(f"ds_read_b32 v{t0}, v{t0} offset:{TAB}")
    A("s_waitcnt lgkmcnt(0)")
    A(f"v_readfirstlane_b32 s{sDESC}, v{t0}")
    unpack()
    A(f"s_cselect_b32 s{sNEED}, 1, 0")
    A("s_branch L_picked")
    A.label("L_first")
    if opt.stamps == 2:
        A("s_memrealtime s[74:75]")
    if opt.stamps == 4:
        A("s_memrealtime s[72:73]")
    A(f"ds_read_b32 v{t0}, v{vZERO} offset:{FLAG}")
    A(f"s_mov_b32 s{sDEEP}, 1")
    A("s_waitcnt lgkmcnt(0)")
    A(f"v_readfirstlane_b32 s{sNEED}, v{t0}")
    A(f"s_cmp_lg_u32 s{sNEED}, 0")
    A(f"s_cbranch_scc1 L_picked")
    A("s_sleep 2")
    A("s_branch L_first")
    A.label("L_ticket")
    A(f"s_cmp_eq_u32 s{sNEED}, 0")
    A(f"s_cbranch_scc1 {'L_tick_null' if opt.wplus else 'L_tick_done'}")
    A(f"v_mov_b32 v{vTICK}, 1")
    A("s_mov_b64 exec, 1")
    A(f"buffer_atomic_add v{vTICK}, v{vZERO}, {sr(sWS,4)}, s{sCNT} offen sc0 sc1")
    A("s_mov_b64 exec, -1")
    A("s_cmp_eq_u32 s2, s2")
    A("s_branch L_tick_done")
    if opt.wplus:
        assert not opt.probe
        A.label("L_tick_null")
        A(f"buffer_load_dword v{vPRB}, v{vZERO}, {sr(sK,4)}, 0 offen")
        A("s_branch L_tick_done")
    if opt.probe:
        A.label("L_probe")
        A(f"s_cmp_eq_u32 s{sPEND}, 0")
        A("s_cbranch_scc1 L_probe1")
        A(f"v_readfirstlane_b32 s{sT}, v{vPRB}")
        A(f"s_mov_b32 s{sPEND}, 0")
        A(f"s_cmp_ge_u32 s{sT}, {opt.thr}")
        A(f"s_cselect_b32 s{sDEEP}, 1, 0")
        if opt.stamps == 2:
            A(f"s_cselect_b32 s{sT}, 1000, 0")
            A(f"s_add_u32 s90, s90, s{sT}")
        A("s_branch L_picked")
        A.label("L_probe1")
        A(f"ds_read_b32 v{t0}, v{vZERO} offset:{FLAG}")
        A(f"s_lshl_b32 s{sT}, s{sT2}, {5 - opt.probe}")
        A(f"s_and_b32 s{sT}, s{sT}, 0xe0")
        A(f"s_add_u32 s{sT}, s{sT}, s{sCNT}")
        A(f"v_mov_b32 v{vPRB}, 1")
        A("s_waitcnt lgkmcnt(0)")
        A(f"v_readfirstlane_b32 s{sPEND}, v{t0}")
        A(f"s_cmp_eq_u32 s{sPEND}, 0")
        A("s_cbranch_scc1 L_picked")
        A("s_mov_b64 exec, 1")
        A(f"buffer_atomic_add v{vPRB}, v{vZERO}, {sr(sWS,4)}, s{sT} offen offset:4 sc0 sc1")
        A("s_mov_b64 exec, -1")
        A("s_branch L_picked")

    def wait(x):
        if W[x] == WD[x]:
            A(f"s_waitcnt vmcnt({W[x]})")
        else:
            assert WD[x] > W[x]
            A(f"s_waitcnt vmcnt({WD[x]})")
            A(f"s_cbranch_scc1 L_w{x}")
            hb = opt.hm and any(int(m, 2) >> x & 1 for m in opt.hm.split(","))
            if hb:
                A(f"s_waitcnt vmcnt({W[x] + 1})")
                A(f"s_bitcmp1_b32 s{sPEND}, {x}")
                A(f"s_cbranch_scc1 L_wb{x}")
                A(f"s_waitcnt vmcnt({W[x]})")
                A.label(f"L_wb{x}")
                A("s_cmp_lg_u32 s2, s2")
            else:
                A(f"s_waitcnt vmcnt({W[x]})")
            A.label(f"L_w{x}")

    A.label("L_body")
    A(f"s_and_b32 s{sN[0]}, s{sNN}, 31")
    A(f"s_lshr_b32 s{sN[1]}, s{sNN}, 5")
    A(f"s_cmp_lg_u32 s{sDEEP}, 0")
    for x in range(8):
        wait(x)
        issue(x + DI)
        if x == 0:
            A(f"s_cmp_eq_u32 s{sMASK}, 0")
            A("s_cbranch_scc1 L_dyn")
            static_pick(); unpack()
            A(f"s_bcnt1_i32_b32 s{sT2}, s{sMASK}")
            A("s_cbranch_scc0 L_first")
            if opt.probe:
                A(f"s_add_u32 s{sT}, s{sT2}, s{sPEND}")
                A(f"s_and_b32 s{sT}, s{sT}, {(1 << opt.probe) - 1}")
                A("s_cbranch_scc0 L_probe")
            A.label("L_picked")
            A(f"s_cmp_lg_u32 s{sDEEP}, 0")
        if x == opt.astep:
            A("s_cbranch_scc1 L_ticket")
            A.label("L_tick_done")
        if x < 4:
            kstep(x)
            if x == 3: softmax(0)
        else:
            i = x - 4
            if i == 0:
                pv(0, 0)
                softmax(1)
                A("s_nop 0")
                pv(1, 0)
            else:
                pv(0, i); pv(1, i)
    A(f"s_cmp_lg_u32 s{sNN}, 0")
    A("s_cbranch_scc1 L_body")

    A.label("L_done")
    if opt.stamps: A("s_memrealtime s[76:77]")
    for b in range(2):
        A(f"s_cmp_eq_u32 s{sFLOOR[b]}, 0")
        A(f"s_cselect_b32 s{sT}, 0, {f2u(-1e30):#x}")
        A(f"v_sub_f32 v{NM[b]}, s{sT}, v{NM[b]}")
    for b in range(2):
        A(f"v_mov_b32 v{T+2*b}, v{L[b]}")
    A("s_nop 1")
    for b in range(2):
        A(f"v_permlane32_swap_b32 v{L[b]}, v{T+2*b}")
    A("s_nop 1")
    for b in range(2):
        A(f"v_add_f32 v{L[b]}, v{L[b]}, v{T+2*b}")
        A(f"v_mov_b32 v{T+2*b}, v{L[b]}")
    A("s_nop 1")
    for b in range(2):
        A(f"v_permlane16_swap_b32 v{L[b]}, v{T+2*b}")
    A("s_nop 1")
    for b in range(2):
        A(f"v_add_f32 v{L[b]}, v{L[b]}, v{T+2*b}")
    e0, e1, e2, e3, e4, e5 = 1, 2, 3, 4, 5, 6
    A(f"v_bfe_u32 v{e0}, v0, 2, 2")
    A(f"v_lshrrev_b32 v{e1}, 4, v0")
    A(f"v_and_b32 v{e2}, 3, v0")
    A(f"s_lshl_b32 s{sT}, s{sWAVE}, 3")
    A(f"v_add_u32 v{e0}, s{sT}, v{e0}")
    A(f"v_lshlrev_b32 v{e3}, 3, v{e0}")
    A(f"v_mul_u32_u24 v{e4}, 132, v{e0}")
    A(f"v_lshl_add_u32 v{e4}, v{e1}, 5, v{e4}")
    A(f"v_add_u32 v{e4}, v{e4}, v{e2}")
    A(f"v_lshlrev_b32 v{e4}, 2, v{e4}")
    A(f"v_add_u32 v{e5}, {4*132*4}, v{e4}")
    A(f"ds_write_b64 v{e3}, {vr(NM[0],2)} offset:{MLB}")
    A(f"ds_write_b64 v{e3}, {vr(NM[1],2)} offset:{MLB+32}")
    for b in range(2):
        for i in range(4):
            A(f"ds_write2_b32 v{e4+b}, v{O[b]+i}, v{O[b]+4+i} offset0:{8*i} offset1:{8*i+4}")
    A(f"s_lshl_b32 s{sT}, s{sWAVE}, 1")
    A("v_lshrrev_b32 v7, 5, v0")
    A(f"v_add_u32 v7, s{sT}, v7")
    A("v_and_b32 v8, 31, v0")
    A("v_lshlrev_b32 v9, 3, v7")
    A("v_mul_u32_u24 v10, 528, v7")
    A("v_lshl_add_u32 v10, v8, 4, v10")
    A("v_lshrrev_b32 v12, 3, v8")
    A("v_lshl_add_u32 v12, v7, 2, v12")
    A("v_and_b32 v8, 7, v8")
    A("v_lshlrev_b32 v11, 12, v12")
    A("v_lshl_add_u32 v11, v8, 4, v11")
    A(f"s_lshl_b32 s{sT}, s{sH}, 17")
    A(f"s_lshl_b32 s{sT2}, s{sS}, 7")
    A(f"s_add_u32 s{sT}, s{sT}, s{sT2}")
    for j in range(4):
        A(f"s_mov_b32 s{52+j}, {0x07060500 + j:#x}")
    A("s_waitcnt vmcnt(0) lgkmcnt(0)")
    A("s_barrier")
    if opt.stamps in (1, 3): A("s_memrealtime s[78:79]")
    if opt.stamps in (2, 4):
        A("s_add_u32 s78, s70, s90")
        A("s_addc_u32 s79, s71, 0")
    ML = 24
    OO = 48
    S = 64
    for w in range(4):
        A(f"ds_read_b64 {vr(ML+2*w,2)}, v9 offset:{MLB+64*w}")
    for w in range(4):
        A(f"ds_read_b128 {vr(OO+4*w,4)}, v10 offset:{4224*w}")
    A("s_waitcnt lgkmcnt(4)")
    A(f"v_max3_f32 v14, v{ML}, v{ML+2}, v{ML+4}")
    A(f"v_max_f32 v14, v14, v{ML+6}")
    for w in range(4):
        A(f"v_sub_f32 v{ML+2*w}, v{ML+2*w}, v14")
    for w in range(4):
        A(f"v_exp_f32 v{ML+2*w}, v{ML+2*w}")
    A(f"v_mul_f32 v15, v{ML}, v{ML+1}")
    for w in range(1, 4):
        A(f"v_fmac_f32 v15, v{ML+2*w}, v{ML+2*w+1}")
    A(f"v_max_f32 v15, {f2u(1e-30):#x}, v15")
    A("v_rcp_f32 v13, v15")
    A("v_log_f32 v15, v15")
    for w in range(4):
        A(f"v_mul_f32 v{ML+2*w}, v{ML+2*w}, v13")
    A("v_add_f32 v14, v14, v15")
    A("s_waitcnt lgkmcnt(0)")
    for i in range(4):
        A(f"v_mul_f32 v{S+i}, v{ML}, v{OO+i}")
    for w in range(1, 4):
        for i in range(4):
            A(f"v_fmac_f32 v{S+i}, v{ML+2*w}, v{OO+4*w+i}")
    for i in range(4):
        A(f"v_perm_b32 v{S+i}, v{S+i}, v14, s{52+i}")
    for i in range(4):
        A(f"v_min_u32 v{S+i}, -2, v{S+i}")
    if opt.atx:
        A("v_and_b32 v8, 31, v0")
        A("v_mul_u32_u24 v11, 1280, v7")
        A("v_lshl_add_u32 v11, v8, 3, v11")
        A(f"s_mul_i32 s{sT}, s{sH}, 10240")
        A(f"s_add_u32 s{sT}, s{sT}, 0x140000")
        for j in range(opt.atx):
            A(f"v_cvt_f64_f32 v[{80+2*j}:{81+2*j}], v{S+(j&3)}")
        for j in range(opt.atx):
            A(f"buffer_atomic_{opt.atop} v[{80+2*j}:{81+2*j}], v11, {sr(sWS,4)}, s{sT} offen offset:{256*j} sc0 {opt.atsc}")
        A("s_branch L_stamps")
    A(f"buffer_store_dwordx4 {vr(S,4)}, v11, {sr(sWS,4)}, s{sT} offen {opt.sth}")
    if opt.bar3:
        A("s_waitcnt vmcnt(0)")
        A("s_barrier")
    if opt.stamps: A("s_branch L_stamps")
    A("s_endpgm")

    A.label("L_service")
    A(f"s_load_dwordx2 {sr(sOUT,2)}, s[0:1], 40")
    A(f"s_load_dwordx2 {sr(sDBG,2)}, s[0:1], 48")
    A("v_mov_b32 v2, 0")
    A("v_mov_b32 v3, 0")
    A(f"ds_write_b64 v2, v[2:3] offset:{TAB+512}")
    A(f"s_mov_b32 s{sOUT+2}, 16384")
    A(f"s_mov_b32 s{sOUT+3}, 0x20000")
    A(f"s_mov_b32 s{sDBG+2}, 256")
    A(f"s_mov_b32 s{sDBG+3}, 0x20000")
    sPO, sPM, sRD, sOO = 40, 41, 42, 46
    A(f"s_lshl_b32 s{sPO}, s{sH}, 5")
    A(f"s_add_u32 s{sPO}, s{sPO}, s{sS}")
    A(f"s_lshl_b32 s{sPO}, s{sPO}, 12")
    A(f"s_lshl_b32 s{sRD}, s{sH}, 5")
    A(f"s_lshr_b32 s{sCNT}, s2, 3")
    A(f"s_lshl_b32 s{sCNT}, s{sCNT}, 8")
    A(f"s_add_u32 s{sCNT}, s{sCNT}, {CNT_OFF:#x}")
    A("v_lshlrev_b32 v1, 4, v0")
    for i in range(4): A(f"v_mov_b32 v{4+i}, -1")
    A("s_waitcnt lgkmcnt(0)")
    A("s_barrier")
    A(f"s_load_dwordx2 s[{sCTX[0]}:{sCTX[1]}], {sr(sCP,2)}, 0")
    if opt.lead:
        A(f"s_and_b32 s{sT}, s2, 7")
        A("s_cbranch_scc1 L_nolead")
        A(f"s_mov_b32 s{sT}, s{sPO}")
        for k in range(8):
            for i in range(4):
                A(f"buffer_store_dwordx4 v[4:7], v1, {sr(sWS,4)}, s{sT} offen offset:{1024*i} sc1")
            if k < 7: A(f"s_add_u32 s{sT}, s{sT}, 4096")
        for i in range(2):
            A(f"buffer_store_dwordx4 v[4:7], v1, {sr(sWS,4)}, s{sPM} offen offset:{1024*i} sc1")
        A("s_mov_b64 exec, 1")
        A(f"buffer_store_dword v2, v2, {sr(sWS,4)}, s{sCNT} offen sc1")
        A("v_mov_b32 v3, 1")
        A("s_waitcnt vmcnt(0)")
        A(f"buffer_atomic_add v3, v2, {sr(sDBG,4)}, 0 offen sc1")
        A("s_mov_b64 exec, -1")
        A.label("L_nolead")
        A(f"s_mov_b32 s{sRD}, 0")
    else:
        if not opt.noclear:
            for i in range(4):
                A(f"buffer_store_dwordx4 v[4:7], v1, {sr(sWS,4)}, s{sPO} offen offset:{1024*i} {opt.clh}")
        A(f"s_and_b32 s{sT}, s2, 7")
        A("s_cbranch_scc1 L_nolead")
        A("v_lshlrev_b32 v20, 2, v0")
        A(f"buffer_store_dword v2, v20, {sr(sWS,4)}, s{sCNT} offen sc1")
        A.label("L_nolead")
    A("s_waitcnt lgkmcnt(0)")
    ctx_setup(False)
    A(f"s_add_u32 s{sT}, s{sCTX[0]}, 15")
    A(f"s_sub_i32 s{sT}, s{sT}, s{sP0[0]}")
    A(f"s_ashr_i32 s{sT}, s{sT}, 4")
    A(f"s_max_i32 s{sT}, s{sT}, 0")
    A(f"s_lshr_b32 s{sP0[0]}, s{sP0[0]}, 4")
    A(f"s_lshr_b32 s{sP0[1]}, s{sP0[1]}, 4")
    A(f"s_sub_i32 s{sP0[1]}, s{sP0[1]}, s{sT}")
    A(f"v_mov_b32 v8, s{sP0[0]}")
    A(f"v_mov_b32 v9, s{sP0[1]}")
    A(f"v_mov_b32 v10, s{sCTX[0]}")
    A(f"v_mov_b32 v11, s{sCTX[1]}")
    A(f"v_lshl_add_u32 v12, v0, 2, s{sG}")
    A("v_add_u32 v13, 256, v12")
    for r in range(2):
        u = 12 + r; p = 14 + r; n = 16 + r; a = 18 + r
        A(f"v_cmp_le_u32 vcc, s{sT}, v{u}")
        A("s_nop 1")
        A(f"v_cndmask_b32 v{p}, v8, v9, vcc")
        A(f"v_cndmask_b32 v{n}, v10, v11, vcc")
        A(f"v_cndmask_b32 v{a}, 0, 1, vcc")
        A(f"v_add_u32 v{p}, v{p}, v{u}")
        A(f"v_lshlrev_b32 v{u}, 4, v{p}")
        A(f"v_sub_u32 v{n}, v{n}, v{u}")
        A(f"v_med3_i32 v{n}, v{n}, 0, 16")
        A(f"v_mul_u32_u24 v{u}, 5, v{a}")
        A(f"v_lshlrev_b32 v{n}, v{u}, v{n}")
        A(f"v_lshlrev_b32 v{p}, 2, v{p}")
        A(f"v_lshl_add_u32 v{p}, v{a}, 13, v{p}")
        A(f"buffer_load_dword v{a}, v{p}, {sr(sBT,4)}, 0 offen")
    A("v_lshlrev_b32 v20, 2, v0")
    A("v_mov_b32 v3, 1")
    A("s_waitcnt vmcnt(0)")
    A("s_mov_b64 exec, 1")
    if not opt.nordy and not opt.lead: A(f"buffer_atomic_add v3, v2, {sr(sDBG,4)}, s{sRD} offen sc1")
    A("s_mov_b64 exec, -1")
    for r in range(2):
        n = 16 + r; a = 18 + r
        A(f"v_min_u32 v{a}, 3071, v{a}")
        A(f"v_cmp_ne_u32 vcc, 0, v{n}")
        A(f"v_lshl_or_b32 v{a}, v{a}, 15, v{n}")
        A("s_nop 0")
        A(f"v_cndmask_b32 v{a}, 0, v{a}, vcc")
        A(f"ds_write_b32 v20, v{a} offset:{TAB+256*r}")
    A(f"s_lshr_b32 s{sOO}, s{sS}, 4")
    A(f"s_lshl_b32 s{sOO}, s{sOO}, 13")
    A(f"s_lshl_b32 s{sT}, s{sH}, 10")
    A(f"s_add_u32 s{sOO}, s{sOO}, s{sT}")
    A(f"s_and_b32 s{sT}, s{sS}, 15")
    A(f"s_lshl_b32 s{sT}, s{sT}, 6")
    A(f"s_add_u32 s{sOO}, s{sOO}, s{sT}")
    A("v_lshlrev_b32 v22, 3, v0")
    A(f"s_mov_b32 s{sT2}, 0x10000")
    A("s_mov_b64 exec, 1")
    if opt.nordy: A("s_branch L_rdy_ok")
    if opt.l2rd:
        n = opt.l2rd
        while n > 0:
            A(f"s_sleep {min(n, 127)}"); n -= 127
        A(f"buffer_load_dword v8, v2, {sr(sDBG,4)}, s{sRD} offen")
        A("s_branch L_rdy_chk")
    A.label("L_rdy")
    for i in range(opt.rsleep): A("s_sleep 127")
    A(f"buffer_load_dword v8, v2, {sr(sDBG,4)}, s{sRD} offen sc1")
    A.label("L_rdy_chk")
    A("s_waitcnt vmcnt(0)")
    A(f"v_readfirstlane_b32 s{sT}, v8")
    A(f"s_cmp_ge_u32 s{sT}, 32")
    A("s_cbranch_scc1 L_rdy_ok")
    A(f"s_sub_u32 s{sT2}, s{sT2}, 1")
    A("s_cbranch_scc0 L_rdy")
    A.label("L_rdy_ok")
    A("s_waitcnt lgkmcnt(0)")
    A(f"ds_write_b32 v2, v3 offset:{FLAG}")
    A("s_mov_b64 exec, -1")
    if opt.stamps: A("s_memrealtime s[72:73]")
    sMISS = [48, 50, 52, 54]
    A(f"s_mov_b32 s{sT2}, 0x40000")
    A("s_mov_b32 s60, 0x0c0c0400")
    A("s_mov_b32 s61, 0x04000c0c")
    A("s_waitcnt lgkmcnt(0)")
    A("s_barrier")
    if opt.stamps: A("s_memrealtime s[74:75]")
    PO = 24; PM = 40
    if opt.atx:
        A("s_memrealtime s[76:77]")
        A("s_mov_b32 s78, s70")
        A("s_mov_b32 s79, s71")
        A("s_branch L_stamps")
    KP = opt.kp
    SETS = [64 + 16 * j for j in range(KP)]
    if opt.pdelay: A(f"s_sleep {opt.pdelay}")
    if opt.bar3: A("s_barrier")
    if opt.aprobe:
        A("v_lshlrev_b32 v21, 7, v0")
        A("s_mov_b64 exec, 0xffffffff")
        A.label("L_apr")
        A("v_mov_b32 v9, 0")
        if opt.aprobe == 1:
            A(f"buffer_atomic_add v9, v21, {sr(sWS,4)}, s{sPO} offen sc0 sc1")
        else:
            A(f"buffer_load_dword v9, v21, {sr(sWS,4)}, s{sPO} offen sc1")
        A("s_waitcnt vmcnt(0)")
        A("v_cmpx_eq_u32 exec, -1, v9")
        A(f"s_sub_u32 s{sT2}, s{sT2}, 1")
        A("s_cbranch_scc1 L_apx")
        A("s_cbranch_execnz L_apr")
        A.label("L_apx")
        A("s_mov_b64 exec, -1")
    for i in range(4):
        A(f"buffer_load_dwordx4 {vr(PO+4*i,4)}, v1, {sr(sWS,4)}, s{sPO} offen offset:{1024*i} {opt.ldh}")
    for i in range(4):
        A(f"s_waitcnt vmcnt({3-i})")
        A(f"v_max3_u32 v8, v{PO+4*i}, v{PO+4*i+1}, v{PO+4*i+2}")
        A(f"v_max_u32 v8, v8, v{PO+4*i+3}")
        A(f"v_cmp_eq_u32 {sr(sMISS[i],2)}, -1, v8")
    def anymiss():
        A(f"s_or_b64 {sr(sEX,2)}, {sr(sMISS[0],2)}, {sr(sMISS[1],2)}")
        A(f"s_or_b64 {sr(56,2)}, {sr(sMISS[2],2)}, {sr(sMISS[3],2)}")
        A(f"s_or_b64 {sr(sEX,2)}, {sr(sEX,2)}, {sr(56,2)}")
        A("s_cbranch_scc0 L_have")
    def pissue(j):
        for i in range(4):
            A(f"s_or_b64 exec, {sr(sMISS[i],2)}, 1")
            A(f"buffer_load_dwordx4 {vr(SETS[j]+4*i,4)}, v1, {sr(sWS,4)}, s{sPO} offen offset:{1024*i} {opt.ldh}")
    anymiss()
    for j in range(KP - 1):
        pissue(j)
        if opt.stag: A(f"s_sleep {opt.stag}")
    A.label("L_poll")
    for j in range(KP):
        pissue((j + KP - 1) % KP)
        A(f"s_waitcnt vmcnt({4 * (KP - 1)})")
        for i in range(4):
            R = SETS[j] + 4 * i
            A(f"s_mov_b64 exec, {sr(sMISS[i],2)}")
            A(f"s_cbranch_execz L_pc{j}_{i}")
            A(f"v_max3_u32 v8, v{R}, v{R+1}, v{R+2}")
            A(f"v_max_u32 v8, v8, v{R+3}")
            for c in range(4):
                A(f"v_mov_b32 v{PO+4*i+c}, v{R+c}")
            A(f"v_cmp_eq_u32 {sr(sMISS[i],2)}, -1, v8")
            A.label(f"L_pc{j}_{i}")
        anymiss()
        if opt.psleep: A(f"s_sleep {opt.psleep}")
    A(f"s_sub_u32 s{sT2}, s{sT2}, 1")
    A("s_cbranch_scc0 L_poll")
    A.label("L_have")
    if opt.stamps:
        A("s_memrealtime s[76:77]")
        A(f"s_sub_u32 s78, 0x40000, s{sT2}")
    DPP8 = "row_ror:8 row_mask:0xf bank_mask:0xf"
    A("s_mov_b64 exec, -1")
    for i in range(4):
        A(f"v_perm_b32 v{PM+2*i}, v{PO+4*i+1}, v{PO+4*i}, s60")
        A(f"v_perm_b32 v{PM+2*i+1}, v{PO+4*i+3}, v{PO+4*i+2}, s61")
    for i in range(4):
        A(f"v_or_b32 v{PM+2*i}, v{PM+2*i}, v{PM+2*i+1}")
    A(f"v_max3_f32 v8, v{PM}, v{PM+2}, v{PM+4}")
    A(f"v_max_f32 v8, v8, v{PM+6}")
    A("s_nop 1")
    A(f"v_max_f32_dpp v8, v8, v8 {DPP8}")
    for sw in ("v_permlane16_swap_b32", "v_permlane32_swap_b32"):
        A("v_mov_b32 v9, v8")
        A("s_nop 1")
        A(f"{sw} v8, v9")
        A("s_nop 1")
        A("v_max_f32 v8, v8, v9")
    for i in range(4):
        A(f"v_sub_f32 v{PM+2*i}, v{PM+2*i}, v8")
    for i in range(4):
        A(f"v_exp_f32 v{PM+2*i}, v{PM+2*i}")
    AC = 48
    A("s_nop 0")
    for j in range(4):
        A(f"v_mul_f32 v{AC+j}, v{PM}, v{PO+j}")
    A(f"v_add_f32 v{AC+4}, v{PM}, v{PM+2}")
    for i in range(1, 4):
        for j in range(4):
            A(f"v_fmac_f32 v{AC+j}, v{PM+2*i}, v{PO+4*i+j}")
        if i > 1: A(f"v_add_f32 v{AC+4}, v{AC+4}, v{PM+2*i}")
    A("s_nop 1")
    for j in range(5):
        A(f"v_add_f32_dpp v{AC+j}, v{AC+j}, v{AC+j} {DPP8}")
    for sw in ("v_permlane16_swap_b32", "v_permlane32_swap_b32"):
        for j in range(5):
            A(f"v_mov_b32 v{AC+8+j}, v{AC+j}")
        for j in range(5):
            A(f"{sw} v{AC+j}, v{AC+8+j}")
        for j in range(5):
            A(f"v_add_f32 v{AC+j}, v{AC+j}, v{AC+8+j}")
    A(f"v_rcp_f32 v{AC+4}, v{AC+4}")
    A("s_mov_b64 exec, 0xff")
    for j in range(4):
        A(f"v_mul_f32 v{AC+j}, v{AC+j}, v{AC+4}")
    A(f"v_cvt_pk_bf16_f32 v{AC}, v{AC}, v{AC+1}")
    A(f"v_cvt_pk_bf16_f32 v{AC+1}, v{AC+2}, v{AC+3}")
    A(f"buffer_store_dwordx2 {vr(AC,2)}, v22, {sr(sOUT,4)}, s{sOO} offen {opt.oh}")
    if opt.stamps:
        A("s_mul_i32 s78, s78, 100")
        A("s_waitcnt lgkmcnt(0)")
        A("s_add_u32 s78, s78, s70")
        A("s_addc_u32 s79, s71, 0")
        A.label("L_stamps")
        A("s_waitcnt vmcnt(0)")
        A("s_memrealtime s[80:81]")
        A("s_mov_b64 exec, -1")
        A("s_waitcnt lgkmcnt(0)")
        A(f"s_add_u32 s84, s{sWS}, 0x4000000")
        A(f"s_addc_u32 s85, s{sWS+1}, 0")
        A("s_and_b32 s85, s85, 0xffff")
        A("s_mov_b32 s86, 0x100000")
        A("s_mov_b32 s87, 0x20000")
        A("s_mul_i32 s88, s2, 5")
        A(f"s_add_u32 s88, s88, s{sWAVE}")
        A("s_mul_i32 s88, s88, 48")
        for j in range(6):
            A(f"v_mov_b32 v0, s{70+2*j}")
            A(f"v_mov_b32 v1, s{71+2*j}")
            A("v_mov_b32 v2, 0")
            A("s_mov_b64 exec, 1")
            A(f"buffer_store_dwordx2 v[0:1], v2, s[84:87], s88 offen offset:{8*j}")
            A("s_waitcnt vmcnt(0)")
    A.label("L_end")
    A("s_endpgm")

    acc = (NV + 3) // 4 * 4
    A.raw('.section .rodata,"a"')
    A.raw(".p2align 6")
    A.raw(f""".amdhsa_kernel {NAME}_kernel
  .amdhsa_next_free_vgpr {NV}
  .amdhsa_next_free_sgpr {96 if opt.stamps else 72}
  .amdhsa_accum_offset {acc}
  .amdhsa_group_segment_fixed_size 0
  .amdhsa_kernarg_size 64
  .amdhsa_user_sgpr_count 2
  .amdhsa_user_sgpr_kernarg_segment_ptr 1
  .amdhsa_system_sgpr_workgroup_id_x 1
.end_amdhsa_kernel""")
    return A.text()

if __name__ == "__main__":
    p = argparse.ArgumentParser()
    p.add_argument("--D", default="5")
    p.add_argument("--TD", default="7")
    p.add_argument("--dyn", type=int, default=1)
    p.add_argument("--rt", type=int, default=128)
    p.add_argument("--psleep", type=int, default=0)
    p.add_argument("--noclear", type=int, default=0)
    p.add_argument("--nordy", type=int, default=0)
    p.add_argument("--rsleep", type=int, default=1)
    p.add_argument("--csleep", type=int, default=0)
    p.add_argument("--hrot", type=int, default=0)
    p.add_argument("--lead", type=int, default=0)
    p.add_argument("--l2rd", type=int, default=0)
    p.add_argument("--sth", default="sc1")
    p.add_argument("--ldh", default="sc1")
    p.add_argument("--clh", default="sc1")
    p.add_argument("--astep", type=int, default=2)
    p.add_argument("--probe", type=int, default=0, help="log2 of the probe period in items")
    p.add_argument("--thr", type=int, default=20)
    p.add_argument("--aprobe", type=int, default=0)
    p.add_argument("--hm", default="", help="4 binary masks (head & 3): steps one deeper")
    p.add_argument("--wmap", type=int, default=0)
    p.add_argument("--atx", type=int, default=0)
    p.add_argument("--atop", default="add_f64")
    p.add_argument("--atsc", default="sc1")
    p.add_argument("--oh", default="")
    p.add_argument("--kp", type=int, default=2)
    p.add_argument("--stag", type=int, default=0)
    p.add_argument("--bar3", type=int, default=0)
    p.add_argument("--pdelay", type=int, default=0)
    p.add_argument("--wplus", type=int, default=0)
    p.add_argument("--hint", default="nt")
    p.add_argument("--lds", type=int, default=0)
    p.add_argument("--stamps", type=int, default=0)
    p.add_argument("-o", default="/dev/stdout")
    o = p.parse_args()
    if o.hint: o.hint = " " + o.hint
    open(o.o, "w").write(gen(o))
```

```python
import sys, argparse, struct

NAME = "standalone__paged_block_table_kv_radixattention__decode"
KV_BYTES = 3072 * 32768
SCALE = (128 ** -0.5) * 1.4426950408889634
def f2u(x): return struct.unpack("<I", struct.pack("<f", x))[0]
NINF = 0xff800000
ML_OFF = 0x100000
CNT_OFF = 0x200000
WS_SIZE = 0x300000

class Asm:
    def __init__(self): self.l = []
    def __call__(self, s): self.l.append("    " + s)
    def label(self, s): self.l.append(s + ":")
    def raw(self, s): self.l.append(s)
    def text(self): return "\n".join(self.l) + "\n"

def vr(a, n): return f"v[{a}:{a+n-1}]"
def sr(a, n): return f"s[{a}:{a+n-1}]"

def gen(opt):
    A = Asm()
    hint = opt.hint
    DI = 7
    MLB = 4 * 8 * 132 * 4
    TAB = MLB + 256
    NR = 5 if opt.gw else 2
    NG = opt.ng if opt.gw else 4
    assert opt.rt <= 128
    FLAG = TAB + (64 * NR + (4 if opt.gw else 1)) * 4
    LDS = FLAG + 4
    header = f"""; Paged-KV (block table, shared radix prefix) GQA decode attention: split-KV with in-kernel combine.
; @launch grid=(256,1,1) block=(320,1,1) lds={max(LDS, opt.lds)}
.amdgcn_target "amdgcn-amd-amdhsa--gfx950"
.text
.globl {NAME}_kernel{chr(10) + ".p2align 12" if opt.pg else ""}
.p2align 8
.type {NAME}_kernel,@function
{NAME}_kernel:"""
    A.raw(header)
    sK, sV, sQ, sBT, sWS = 8, 12, 16, 20, 24
    sCP = 28
    sCTX = [30, 31]
    sH, sS, sWAVE, sW, sMASK, sLANE, sDESC, sOFF = 32, 33, 34, 35, 36, 37, 38, 39
    sN = [40, 41]; sNN = 42
    sT, sT2, sSIZE = 43, 44, 45
    sZ = [46, 47]
    sTHR = [48, 49]; sFLOOR = [50, 51]
    sMK = [52, 54]
    sQO = [56, 57]
    sEX = 58
    sG, sCNT = 60, 61
    sP0 = [62, 63]
    sOUT, sDBG = 64, 4
    vK, vK2, vV, vV2, vM0, vM1, vDESC, vC, vNINF = 1, 2, 3, 4, 5, 6, 7, 8, 9
    vTOK = 10
    NM = [14, 16]; L = [15, 17]
    T = 18
    Q = [24, 28]
    O = [32, 40]
    D = [48, 52]
    X = [56, 60]
    B = [64, 72]
    RING = 80
    vTICK, vZERO, vPRB = RING + 32, RING + 33, RING + 34
    vEA, vEB, vEM, vRM, vRO, vSA = range(RING + 35, RING + 41)
    NV = max(RING + 41, 48 + 16 * (opt.kp + opt.ka))
    sX = 92 if (opt.stamps or opt.diag) else 70
    sPERM, sST = sX, sX + 4
    sNEED, sDEEP, sPEND = 68, 69, 3
    def piece(p): return vr(RING + 4 * p, 4)
    t0, t1, t2, t3, t4, t5 = range(T, T + 6)

    A("s_cmp_ge_u32 s2, 256")
    A("s_cbranch_scc1 L_end")
    if opt.stamps or opt.diag: A("s_memrealtime s[70:71]")
    A(f"s_load_dwordx2 {sr(sBT,2)}, s[0:1], 24")
    A(f"s_load_dwordx2 {sr(sQ,2)}, s[0:1], 0")
    A(f"s_load_dwordx2 {sr(sK,2)}, s[0:1], 8")
    A(f"s_load_dwordx2 {sr(sV,2)}, s[0:1], 16")
    A(f"s_load_dwordx2 {sr(sCP,2)}, s[0:1], 32")
    A(f"s_load_dwordx2 {sr(sWS,2)}, s[0:1], 56")
    A(f"v_lshrrev_b32 v{t0}, 6, v0")
    A("v_and_b32 v0, 63, v0")
    A(f"v_readfirstlane_b32 s{sWAVE}, v{t0}")
    A(f"s_bfe_u32 s{sH}, s2, 0x30003")
    if opt.hrot:
        A(f"s_add_u32 s{sH}, s{sH}, {opt.hrot}")
        A(f"s_and_b32 s{sH}, s{sH}, 7")
    A(f"s_lshr_b32 s{sG}, s2, 6")
    A(f"s_lshl_b32 s{sS}, s{sG}, 3")
    A(f"s_and_b32 s{sT}, s2, 7")
    A(f"s_add_u32 s{sS}, s{sS}, s{sT}")
    for s, size in ((sBT, 16384), (sWS, WS_SIZE)):
        A(f"s_mov_b32 s{s+2}, {size}")
        A(f"s_mov_b32 s{s+3}, 0x20000")
    A(f"s_cmp_eq_u32 s{sWAVE}, 4")
    A("s_cbranch_scc1 L_service")
    if opt.wmap == 0:
        A(f"s_lshl_b32 s{sW}, s{sWAVE}, 5")
        A(f"s_add_u32 s{sW}, s{sW}, s{sS}")
    elif opt.wmap == 1:
        A(f"s_lshl_b32 s{sW}, s{sS}, 2")
        A(f"s_add_u32 s{sW}, s{sW}, s{sWAVE}")
    elif opt.wmap == 2:
        A(f"s_and_b32 s{sW}, s2, 7")
        A(f"s_lshl_b32 s{sW}, s{sW}, 2")
        A(f"s_add_u32 s{sW}, s{sW}, s{sG}")
        A(f"s_lshl_b32 s{sW}, s{sW}, 2")
        A(f"s_add_u32 s{sW}, s{sW}, s{sWAVE}")
    elif opt.wmap == 3:
        A(f"s_lshl_b32 s{sW}, s{sWAVE}, 5")
        A(f"s_add_u32 s{sW}, s{sW}, s{sS}")
        A(f"s_lshl_b32 s{sT}, s{sH}, 4")
        A(f"s_add_u32 s{sW}, s{sW}, s{sT}")
        A(f"s_and_b32 s{sW}, s{sW}, 127")
    for s, size in ((sQ, 16384), (sK, KV_BYTES), (sV, KV_BYTES)):
        A(f"s_mov_b32 s{s+2}, {size}")
        A(f"s_mov_b32 s{s+3}, 0x20000")
    pB, pJ, pBT, pTOK, pQ, pPH = X[0], X[0] + 1, X[0] + 2, X[0] + 3, X[1], X[1] + 1
    A(f"v_and_b32 v{pB}, 1, v0")
    A(f"v_lshrrev_b32 v{pJ}, 1, v0")
    A(f"v_lshlrev_b32 v{pBT}, 13, v{pB}")
    A(f"v_lshl_add_u32 v{pBT}, v{pJ}, 9, v{pBT}")
    A(f"s_lshl_b32 s{sT}, s{sW}, 2")
    A(f"v_and_b32 v{t0}, 15, v0")
    A(f"v_lshrrev_b32 v{t1}, 4, v0")
    A(f"v_lshrrev_b32 v{t2}, 2, v{t0}")
    A(f"v_and_b32 v{t3}, 3, v0")
    A(f"v_lshlrev_b32 v{t4}, 6, v{t1}")
    A(f"v_lshl_add_u32 v{t4}, v{t3}, 4, v{t4}")
    A(f"v_lshl_add_u32 v{pQ}, v{t2}, 8, v{t4}")
    A(f"s_lshl_b32 s{sT2}, s{sH}, 8")
    A(f"s_lshl_b32 s{sQO[0]}, s{sH}, 10")
    A(f"s_add_u32 s{sQO[1]}, s{sQO[0]}, 8192")
    A(f"v_lshl_add_u32 v{vK}, v{t2}, 13, v{t4}")
    A(f"v_add_u32 v{vK}, s{sT2}, v{vK}")
    A(f"v_add_u32 v{vK2}, 4096, v{vK}")
    A(f"v_lshlrev_b32 v{vV}, 13, v{t1}")
    A(f"v_lshl_add_u32 v{vV}, v{t0}, 4, v{vV}")
    A(f"v_add_u32 v{vV}, s{sT2}, v{vV}")
    A(f"v_add_u32 v{vV2}, 4096, v{vV}")
    A(f"s_lshl_b32 s{sOFF}, s{sW}, 15")
    A(f"s_mov_b32 s{sSIZE}, {KV_BYTES}")
    A(f"s_mov_b32 s{sDEEP}, 0")
    A(f"s_mov_b32 s{sNEED}, 0")
    A(f"s_mov_b32 s{sPEND}, 0")
    if opt.hm:
        assert not opt.probe
        hm = [int(x, 2) for x in opt.hm.split(",")]
        assert len(hm) == 4
        word = sum(m << (8 * i) for i, m in enumerate(hm))
        A(f"s_lshl_b32 s{sPEND}, s{sH}, 3")
        A(f"s_lshr_b32 s{sPEND}, {word:#x}, s{sPEND}")
    if opt.stamps in (2, 4): A("s_mov_b32 s90, 0")

    def issue(p):
        p &= 7
        i = p & 3
        if p < 4:
            A(f"buffer_load_dwordx4 {piece(p)}, v{vK if i < 2 else vK2}, {sr(sK,4)}, s{sOFF} offen offset:{2048*(i&1)}{hint}")
        else:
            A(f"buffer_load_dwordx4 {piece(p)}, v{vV if i < 2 else vV2}, {sr(sV,4)}, s{sOFF} offen offset:{2048*(i&1)}{hint}")

    def ctx_setup(zflags):
        for b in range(2):
            A(f"s_cmp_lt_i32 s{sCTX[b]}, 1")
            if zflags: A(f"s_cselect_b32 s{sZ[b]}, 1, 0")
            A(f"s_cselect_b32 s{sCTX[b]}, 0x8000, s{sCTX[b]}")
            A(f"s_min_u32 s{sCTX[b]}, s{sCTX[b]}, 0x8000")
        if not opt.dyn:
            for b in range(2): A(f"s_mov_b32 s{sP0[b]}, 0x8000")
            return
        for b in range(2):
            A(f"s_and_b32 s{sP0[b]}, s{sCTX[b]}, 0xf800")
        A(f"s_add_u32 s{sT}, s{sCTX[0]}, s{sCTX[1]}")
        A(f"s_sub_u32 s{sT}, s{sT}, s{sP0[0]}")
        A(f"s_sub_u32 s{sT}, s{sT}, s{sP0[1]}")
        A(f"s_cmp_lt_u32 s{sT}, {opt.rt * 16}")
        A(f"s_cselect_b32 s{sT}, 2048, 0")
        A(f"s_cmp_lt_u32 s{sP0[0]}, s{sP0[1]}")
        A(f"s_cselect_b32 s{sT2}, 0, s{sT}")
        A(f"s_cselect_b32 s{sT}, s{sT}, 0")
        A(f"s_sub_i32 s{sP0[0]}, s{sP0[0]}, s{sT2}")
        A(f"s_sub_i32 s{sP0[1]}, s{sP0[1]}, s{sT}")
        A(f"s_max_i32 s{sT}, s{sP0[0]}, s{sP0[1]}")
        A(f"s_cmp_lt_i32 s{sT}, 4096")
        for b in range(2):
            A(f"s_cselect_b32 s{sP0[b]}, 0x8000, s{sP0[b]}")

    A("s_waitcnt lgkmcnt(0)")
    order = {0: "b c q0 q1 0 1 2 3 4 5 6", 1: "0 1 b c 2 q0 q1 3 4 5 6", 2: "0 b c 1 2 q0 q1 3 4 5 6", 3: "c 0 1 2 b q0 q1 3 4 5 6", 4: "b c 0 1 2 q0 q1 3 4 5 6"}[opt.ord].split()
    vm = [o for o in order if o != "c"]
    W_BT = len(vm) - 1 - vm.index("b")
    W_Q = len(vm) - 1 - vm.index("q1")
    for o in order:
        if o == "b": A(f"buffer_load_dword v{pPH}, v{pBT}, {sr(sBT,4)}, s{sT} offen")
        elif o == "c": A(f"s_load_dwordx2 s[{sCTX[0]}:{sCTX[1]}], {sr(sCP,2)}, 0")
        elif o[0] == "q": A(f"buffer_load_dwordx4 {vr(Q[int(o[1])],4)}, v{pQ}, {sr(sQ,4)}, s{sQO[int(o[1])]} offen")
        else: issue(int(o))
    if opt.stamps: A("s_memrealtime s[72:73]")
    for i in range(4):
        A(f"v_lshl_add_u32 v{vTOK+i}, v{t1}, 2, {i}")
    A(f"v_mov_b32 v{vC}, {f2u(SCALE):#x}")
    A(f"v_mov_b32 v{vNINF}, {NINF:#x}")
    A(f"v_mov_b32 v{vTICK}, {0x1000 if opt.gw else 128}")
    A(f"v_mov_b32 v{vZERO}, 0")
    A(f"v_and_b32 v{t4}, 1, v{t3}")
    A(f"v_lshlrev_b32 v{t4}, 4, v{t4}")
    A(f"v_mov_b32 v{t5}, 0xffff")
    A(f"v_lshlrev_b32 v{t5}, v{t4}, v{t5}")
    A(f"v_cmp_gt_u32 vcc, 2, v{t3}")
    A(f"s_lshl_b32 s{sT}, s{sW}, 4")
    A(f"v_lshlrev_b32 v{pTOK}, 11, v{pJ}")
    A(f"v_cndmask_b32 v{vM0}, 0, v{t5}, vcc")
    A(f"v_xor_b32 v{vM1}, v{vM0}, v{t5}")
    A(f"v_add_u32 v{pTOK}, s{sT}, v{pTOK}")
    for b in range(2):
        for i in range(8):
            A(f"v_mov_b32 v{O[b]+i}, 0")
        A(f"v_mov_b32 v{NM[b]}, 0")
        A(f"v_mov_b32 v{L[b]}, 0")
        A(f"s_mov_b32 s{sTHR[b]}, {NINF:#x}")
        A(f"s_mov_b32 s{sFLOOR[b]}, {NINF:#x}")
    A(f"s_lshl_b32 s{sT}, s{sWAVE}, 3")
    A(f"v_add_u32 v{t0}, s{sT}, v{t2}")
    A(f"v_mul_u32_u24 v{vEA}, 132, v{t0}")
    A(f"v_lshl_add_u32 v{vEA}, v{t1}, 5, v{vEA}")
    A(f"v_add_lshl_u32 v{vEA}, v{vEA}, v{t3}, 2")
    A(f"v_add_u32 v{vEB}, {4*132*4}, v{vEA}")
    A(f"v_lshrrev_b32 v{t0}, 5, v0")
    A(f"v_lshl_add_u32 v{t4}, v{t0}, 2, v{t2}")
    A(f"v_lshl_add_u32 v{vEM}, v{t4}, 5, s{sT}")
    A(f"s_lshl_b32 s{sT}, s{sWAVE}, 1")
    A(f"v_add_u32 v{t0}, s{sT}, v{t0}")
    A(f"v_lshlrev_b32 v{vRM}, 5, v{t0}")
    A(f"v_and_b32 v{t4}, 31, v0")
    A(f"v_mul_u32_u24 v{vRO}, 528, v{t0}")
    A(f"v_lshl_add_u32 v{vRO}, v{t4}, 4, v{vRO}")
    A(f"v_lshrrev_b32 v{t5}, 3, v{t4}")
    A(f"v_lshl_add_u32 v{t5}, v{t0}, 2, v{t5}")
    A(f"v_and_b32 v{t4}, 7, v{t4}")
    HF = opt.half
    A(f"v_lshlrev_b32 v{vSA}, {12 + HF}, v{t5}")
    A(f"v_lshl_add_u32 v{vSA}, v{t4}, 4, v{vSA}")
    if HF:
        A(f"v_and_b32 v{t4}, 4, v{t4}")
        A(f"v_lshl_add_u32 v{vSA}, v{t4}, 4, v{vSA}")
    A(f"s_lshl_b32 s{sST}, s{sH}, {17 + HF}")
    A(f"s_lshl_b32 s{sT}, s{sS}, {7 + HF}")
    A(f"s_add_u32 s{sST}, s{sST}, s{sT}")
    for j in range(4):
        A(f"s_mov_b32 s{sPERM+j}, {0x07060500 + j:#x}")
    A(f"v_cmp_eq_u32 vcc, 1, v{pB}")
    if opt.gw:
        A(f"s_add_u32 s{sG}, s{sG}, s{sWAVE}")
        A(f"s_and_b32 s{sG}, s{sG}, {NG - 1}")
        A(f"s_lshl_b32 s{sCNT}, s{sG}, 3")
        A(f"s_bfe_u32 s{sT}, s2, 0x30003")
        A(f"s_add_u32 s{sCNT}, s{sCNT}, s{sT}")
        A(f"s_lshl_b32 s{sG}, s{sG}, 2")
    else:
        A(f"s_lshr_b32 s{sCNT}, s2, 3")
    A(f"s_lshl_b32 s{sCNT}, s{sCNT}, 8")
    A(f"s_add_u32 s{sCNT}, s{sCNT}, {CNT_OFF:#x}")
    A("s_barrier")
    A("s_waitcnt lgkmcnt(0)")
    ctx_setup(True)
    for b in range(2):
        A(f"s_min_u32 s{sCTX[b]}, s{sCTX[b]}, s{sP0[b]}")
    A(f"v_mov_b32 v{t0}, s{sCTX[0]}")
    A(f"v_mov_b32 v{t2}, s{sCTX[1]}")
    A(f"v_cndmask_b32 v{t4}, v{t0}, v{t2}, vcc")
    A(f"v_cndmask_b32 v{t2}, v{t2}, v{t0}, vcc")
    A(f"v_sub_u32 v{t4}, v{t4}, v{pTOK}")
    A(f"v_sub_u32 v{t2}, v{t2}, v{pTOK}")
    A(f"v_med3_i32 v{t4}, v{t4}, 0, 16")
    A(f"v_med3_i32 v{t2}, v{t2}, 0, 16")
    A(f"v_lshlrev_b32 v{t0}, 5, v{t4}")
    A(f"v_lshl_or_b32 v{t2}, v{t2}, 5, v{t4}")
    A(f"v_cndmask_b32 v{t4}, v{t4}, v{t0}, vcc")
    A(f"v_cndmask_b32 v{t2}, v{t2}, v{vZERO}, vcc")
    A(f"v_cmp_gt_u32 {sr(sEX,2)}, 32, v0")
    A(f"s_waitcnt vmcnt({W_BT})")
    A(f"v_min_u32 v{pPH}, 3071, v{pPH}")
    A("s_nop 1")
    A(f"v_mov_b32_dpp v{t5}, v{pPH} quad_perm:[1,0,3,2] row_mask:0xf bank_mask:0xf")
    A(f"v_cmp_eq_u32 vcc, v{t5}, v{pPH}")
    A("s_nop 1")
    A(f"v_cndmask_b32 v{t2}, v{t4}, v{t2}, vcc")
    A(f"v_cndmask_b32 v{t2}, v{vZERO}, v{t2}, {sr(sEX,2)}")
    A(f"v_cmp_ne_u32 vcc, 0, v{t2}")
    A(f"v_lshl_or_b32 v{vDESC}, v{pPH}, 15, v{t2}")
    A(f"s_mov_b32 s{sT}, s{sOFF}")
    A(f"s_mov_b32 s{sMASK}, vcc_lo")

    def static_pick():
        A(f"s_ff1_i32_b32 s{sLANE}, s{sMASK}")
        A(f"s_bitset0_b32 s{sMASK}, s{sLANE}")
        A(f"v_readlane_b32 s{sDESC}, v{vDESC}, s{sLANE}")
    def unpack():
        A(f"s_and_b32 s{sOFF}, s{sDESC}, 0xffff8000")
        A(f"s_and_b32 s{sNN}, s{sDESC}, 0x3ff")
        A(f"s_cselect_b32 s{sK+2}, s{sSIZE}, 0")
        A(f"s_cselect_b32 s{sV+2}, s{sSIZE}, 0")

    static_pick(); unpack()
    A("s_cbranch_scc0 L_done")
    A(f"s_cmp_eq_u32 s{sT}, s{sOFF}")
    A("s_cbranch_scc1 L_spec_ok")
    A("s_waitcnt vmcnt(0)")
    for p in range(DI): issue(p)
    A.label("L_spec_ok")
    A(f"s_or_b32 s{sT}, s{sZ[0]}, s{sZ[1]}")
    A("s_cbranch_scc0 L_go")
    A(f"s_waitcnt vmcnt({W_Q})")
    for b in range(2):
        A(f"s_cmp_eq_u32 s{sZ[b]}, 0")
        A(f"s_cbranch_scc1 L_noz{b}")
        for i in range(4):
            A(f"v_mov_b32 v{Q[b]+i}, 0")
        A.label(f"L_noz{b}")
    A.label("L_go")
    A(f"s_waitcnt vmcnt({min(W_Q, 4)})")
    if opt.stamps:
        A("s_memrealtime s[74:75]")
    A("s_branch L_body")

    def kstep(i):
        K = piece(i)
        for b in range(2):
            A(f"v_mfma_f32_16x16x32_bf16 {vr(D[b],4)}, {K}, {vr(Q[b],4)}, 0")
        for b in range(2):
            A(f"v_mov_b32 v{X[b]+i}, v{NM[b]}")
        for b in range(2):
            A(f"v_cmp_gt_u32 {sr(sMK[b],2)}, s{sN[b]}, v{vTOK+i}")
        A("s_nop 2")
        for j in range(4):
            for b in range(2):
                A(f"v_fmac_f32_dpp v{X[b]+i}, v{D[b]+j}, v{vC} quad_perm:[{j},{j},{j},{j}] row_mask:0xf bank_mask:0xf")
            if j < 3: A("s_nop 0")
        for b in range(2):
            A(f"v_cndmask_b32 v{X[b]+i}, v{vNINF}, v{X[b]+i}, {sr(sMK[b],2)}")

    def softmax(b):
        x = X[b]
        A(f"v_max3_f32 v{t0}, v{x}, v{x+1}, v{x+2}")
        A(f"v_max_f32 v{t0}, v{t0}, v{x+3}")
        A(f"v_cmp_lt_f32 vcc, s{sTHR[b]}, v{t0}")
        A(f"s_cbranch_vccnz L_slow{b}")
        A.label(f"L_back{b}")
        for i in range(4):
            A(f"v_exp_f32 v{x+i}, v{x+i}")
        A(f"v_add_f32 v{t2}, v{x}, v{x+1}")
        A(f"v_add_f32 v{t3}, v{x+2}, v{x+3}")
        for i in range(4):
            A(f"v_cvt_pk_bf16_f32 v{x+i}, v{x+i}, v{x+i}")
        A(f"v_add_f32 v{t2}, v{t2}, v{t3}")
        for i in range(4):
            A(f"v_and_b32 v{B[b]+2*i}, v{x+i}, v{vM0}")
            A(f"v_and_b32 v{B[b]+2*i+1}, v{x+i}, v{vM1}")
        A(f"v_add_f32 v{L[b]}, v{L[b]}, v{t2}")

    def slow(b):
        x = X[b]
        A.label(f"L_slow{b}")
        A(f"v_mov_b32 v{t1}, v{t0}")
        A("s_nop 1")
        A(f"v_permlane32_swap_b32 v{t0}, v{t1}")
        A("s_nop 1")
        A(f"v_max_f32 v{t0}, v{t0}, v{t1}")
        A(f"v_mov_b32 v{t1}, v{t0}")
        A("s_nop 1")
        A(f"v_permlane16_swap_b32 v{t0}, v{t1}")
        A("s_nop 1")
        A(f"v_max3_f32 v{t0}, v{t0}, v{t1}, s{sFLOOR[b]}")
        A(f"v_max_f32 v{t1}, 0, v{t0}")
        A(f"v_exp_f32 v{t1}, -v{t1}")
        A(f"v_sub_f32 v{NM[b]}, v{NM[b]}, v{t0}")
        for i in range(4):
            A(f"v_sub_f32 v{x+i}, v{x+i}, v{t0}")
        for i in range(8):
            A(f"v_mul_f32 v{O[b]+i}, v{t1}, v{O[b]+i}")
        A(f"v_mul_f32 v{L[b]}, v{t1}, v{L[b]}")
        A(f"s_mov_b32 s{sTHR[b]}, {f2u(8.0):#x}")
        A(f"s_mov_b32 s{sFLOOR[b]}, 0")
        A(f"s_branch L_back{b}")

    def pv(b, i):
        V = RING + 16 + 4 * i
        A(f"v_mfma_f32_16x16x16_bf16 {vr(O[b],4)}, {vr(V,2)}, {vr(B[b]+2*i,2)}, {vr(O[b],4)}")
        A(f"v_mfma_f32_16x16x16_bf16 {vr(O[b]+4,4)}, {vr(V+2,2)}, {vr(B[b]+2*i,2)}, {vr(O[b]+4,4)}")

    W = [int(c) - 1 for c in (opt.D if len(opt.D) == 8 else opt.D * 8)]
    WD = [int(c) - 1 for c in (opt.TD if len(opt.TD) == 8 else opt.TD * 8)]
    assert all(w <= DI - 1 for w in W + WD)
    WD[0] = max(W[0], min(WD[0], 7 - opt.astep))
    assert WD[0] <= 7 - opt.astep
    if opt.wplus:
        for x in range(opt.astep + 1, 8): WD[x] += 1
    slow(0); slow(1)
    A.label("L_dyn")
    if opt.stamps in (2, 4):
        if opt.stamps == 2: A("s_mov_b64 s[72:73], s[74:75]")
        A("s_memrealtime s[74:75]")
        A("s_add_u32 s90, s90, 100")
    if opt.gw:
        A(f"v_min_u32 v{t0}, {64 * NR // NG}, v{vTICK}")
        A(f"v_lshl_add_u32 v{t0}, v{t0}, {2 + NG.bit_length() - 1}, s{sG}")
    else:
        A(f"v_min_u32 v{t0}, 128, v{vTICK}")
        A(f"v_lshlrev_b32 v{t0}, 2, v{t0}")
    A(f"ds_read_b32 v{t0}, v{t0} offset:{TAB}")
    A("s_waitcnt lgkmcnt(0)")
    A(f"v_readfirstlane_b32 s{sDESC}, v{t0}")
    unpack()
    A(f"s_cselect_b32 s{sNEED}, 1, 0")
    A("s_branch L_picked")
    A.label("L_first")
    if opt.stamps == 2:
        A("s_memrealtime s[74:75]")
    if opt.stamps == 4:
        A("s_memrealtime s[72:73]")
    A(f"ds_read_b32 v{t0}, v{vZERO} offset:{FLAG}")
    A(f"s_mov_b32 s{sDEEP}, 1")
    A("s_waitcnt lgkmcnt(0)")
    A(f"v_readfirstlane_b32 s{sNEED}, v{t0}")
    A(f"s_cmp_lg_u32 s{sNEED}, 0")
    A(f"s_cbranch_scc1 L_picked")
    A("s_sleep 2")
    A("s_branch L_first")
    A.label("L_ticket")
    A(f"s_cmp_eq_u32 s{sNEED}, 0")
    A(f"s_cbranch_scc1 {'L_tick_null' if opt.wplus else 'L_tick_done'}")
    A(f"v_mov_b32 v{vTICK}, 1")
    A("s_mov_b64 exec, 1")
    A(f"buffer_atomic_add v{vTICK}, v{vZERO}, {sr(sWS,4)}, s{sCNT} offen sc0 sc1")
    A("s_mov_b64 exec, -1")
    A("s_cmp_eq_u32 s2, s2")
    A("s_branch L_tick_done")
    if opt.wplus:
        assert not opt.probe
        A.label("L_tick_null")
        A(f"buffer_load_dword v{vPRB}, v{vZERO}, {sr(sK,4)}, 0 offen")
        A("s_branch L_tick_done")
    if opt.probe:
        A.label("L_probe")
        A(f"s_cmp_eq_u32 s{sPEND}, 0")
        A("s_cbranch_scc1 L_probe1")
        A(f"v_readfirstlane_b32 s{sT}, v{vPRB}")
        A(f"s_mov_b32 s{sPEND}, 0")
        A(f"s_cmp_ge_u32 s{sT}, {opt.thr}")
        A(f"s_cselect_b32 s{sDEEP}, 1, 0")
        if opt.stamps == 2:
            A(f"s_cselect_b32 s{sT}, 1000, 0")
            A(f"s_add_u32 s90, s90, s{sT}")
        A("s_branch L_picked")
        A.label("L_probe1")
        A(f"ds_read_b32 v{t0}, v{vZERO} offset:{FLAG}")
        A(f"s_lshl_b32 s{sT}, s{sT2}, {5 - opt.probe}")
        A(f"s_and_b32 s{sT}, s{sT}, 0xe0")
        A(f"s_add_u32 s{sT}, s{sT}, s{sCNT}")
        A(f"v_mov_b32 v{vPRB}, 1")
        A("s_waitcnt lgkmcnt(0)")
        A(f"v_readfirstlane_b32 s{sPEND}, v{t0}")
        A(f"s_cmp_eq_u32 s{sPEND}, 0")
        A("s_cbranch_scc1 L_picked")
        A("s_mov_b64 exec, 1")
        A(f"buffer_atomic_add v{vPRB}, v{vZERO}, {sr(sWS,4)}, s{sT} offen offset:4 sc0 sc1")
        A("s_mov_b64 exec, -1")
        A("s_branch L_picked")

    def wait(x):
        if W[x] == WD[x]:
            A(f"s_waitcnt vmcnt({W[x]})")
        else:
            assert WD[x] > W[x]
            A(f"s_waitcnt vmcnt({WD[x]})")
            A(f"s_cbranch_scc1 L_w{x}")
            hb = opt.hm and any(int(m, 2) >> x & 1 for m in opt.hm.split(","))
            if hb:
                A(f"s_waitcnt vmcnt({W[x] + 1})")
                A(f"s_bitcmp1_b32 s{sPEND}, {x}")
                A(f"s_cbranch_scc1 L_wb{x}")
                A(f"s_waitcnt vmcnt({W[x]})")
                A.label(f"L_wb{x}")
                A("s_cmp_lg_u32 s2, s2")
            else:
                A(f"s_waitcnt vmcnt({W[x]})")
            A.label(f"L_w{x}")

    A.label("L_body")
    A(f"s_and_b32 s{sN[0]}, s{sNN}, 31")
    A(f"s_lshr_b32 s{sN[1]}, s{sNN}, 5")
    A(f"s_cmp_lg_u32 s{sDEEP}, 0")
    for x in range(8):
        wait(x)
        issue(x + DI)
        if x == 0:
            A(f"s_cmp_eq_u32 s{sMASK}, 0")
            A("s_cbranch_scc1 L_dyn")
            static_pick(); unpack()
            A(f"s_bcnt1_i32_b32 s{sT2}, s{sMASK}")
            A("s_cbranch_scc0 L_first")
            if opt.probe:
                A(f"s_add_u32 s{sT}, s{sT2}, s{sPEND}")
                A(f"s_and_b32 s{sT}, s{sT}, {(1 << opt.probe) - 1}")
                A("s_cbranch_scc0 L_probe")
            A.label("L_picked")
            A(f"s_cmp_lg_u32 s{sDEEP}, 0")
        if x == opt.astep:
            A("s_cbranch_scc1 L_ticket")
            A.label("L_tick_done")
        if x < 4:
            kstep(x)
            if x == 3: softmax(0)
        else:
            i = x - 4
            if i == 0:
                pv(0, 0)
                softmax(1)
                A("s_nop 0")
                pv(1, 0)
            else:
                pv(0, i); pv(1, i)
    A(f"s_cmp_lg_u32 s{sNN}, 0")
    A("s_cbranch_scc1 L_body")

    A.label("L_done")
    if opt.stamps: A("s_memrealtime s[76:77]")
    def ow(k):
        b_, i = k >> 2, k & 3
        A(f"ds_write2_b32 v{vEA if b_ == 0 else vEB}, v{O[b_]+i}, v{O[b_]+4+i} offset0:{8*i} offset1:{8*i+4}")
    assert L[0] == NM[0] + 1
    A(f"v_permlane32_swap_b32 v{L[0]}, v{L[1]}")
    A(f"s_cmp_eq_u32 s{sFLOOR[0]}, 0")
    A(f"s_cselect_b32 s{sT}, 0, {f2u(-1e30):#x}")
    A(f"v_add_f32 v{L[0]}, v{L[0]}, v{L[1]}")
    A(f"v_sub_f32 v{NM[0]}, s{sT}, v{NM[0]}")
    A(f"s_cmp_eq_u32 s{sFLOOR[1]}, 0")
    A(f"s_cselect_b32 s{sT2}, 0, {f2u(-1e30):#x}")
    A(f"v_sub_f32 v{NM[1]}, s{sT2}, v{NM[1]}")
    A(f"v_mov_b32 v{t0}, v{L[0]}")
    ow(0); ow(1)
    A(f"v_permlane16_swap_b32 v{L[0]}, v{t0}")
    A(f"v_permlane32_swap_b32 v{NM[0]}, v{NM[1]}")
    ow(2); ow(3)
    A(f"v_add_f32 v{L[0]}, v{L[0]}, v{t0}")
    A(f"ds_write_b64 v{vEM}, {vr(NM[0],2)} offset:{MLB}")
    for k in range(4, 8): ow(k)
    A("s_waitcnt lgkmcnt(0)")
    A("s_barrier")
    if opt.stamps in (1, 3, 5): A("s_memrealtime s[78:79]")
    if opt.stamps in (2, 4):
        A("s_add_u32 s78, s70, s90")
        A("s_addc_u32 s79, s71, 0")
    ML = 68
    OO = 48
    S = 64
    A.label("L_epi")
    for w in range(2):
        A(f"ds_read_b128 {vr(ML+4*w,4)}, v{vRM} offset:{MLB+16*w}")
    for w in range(4):
        A(f"ds_read_b128 {vr(OO+4*w,4)}, v{vRO} offset:{4224*w}")
    A("s_waitcnt lgkmcnt(4)")
    A(f"v_max3_f32 v14, v{ML}, v{ML+2}, v{ML+4}")
    A(f"v_max_f32 v14, v14, v{ML+6}")
    for w in range(4):
        A(f"v_sub_f32 v{ML+2*w}, v{ML+2*w}, v14")
    for w in range(4):
        A(f"v_exp_f32 v{ML+2*w}, v{ML+2*w}")
    A(f"v_mul_f32 v15, v{ML}, v{ML+1}")
    for w in range(1, 4):
        A(f"v_fmac_f32 v15, v{ML+2*w}, v{ML+2*w+1}")
    A(f"v_max_f32 v15, {f2u(1e-30):#x}, v15")
    A("v_rcp_f32 v12, v15")
    A("v_log_f32 v15, v15")
    A("s_waitcnt lgkmcnt(0)")
    for i in range(2):
        A(f"v_pk_mul_f32 {vr(S+2*i,2)}, {vr(OO+2*i,2)}, {vr(ML,2)} op_sel_hi:[1,0]")
    A("v_add_f32 v14, v14, v15")
    for w in range(1, 4):
        for i in range(2):
            A(f"v_pk_fma_f32 {vr(S+2*i,2)}, {vr(OO+4*w+2*i,2)}, {vr(ML+2*w,2)}, {vr(S+2*i,2)} op_sel_hi:[1,0,1]")
    for i in range(2):
        A(f"v_pk_mul_f32 {vr(S+2*i,2)}, {vr(S+2*i,2)}, v[12:13] op_sel_hi:[1,0]")
    for i in range(4):
        A(f"v_perm_b32 v{S+i}, v{S+i}, v14, s{sPERM+i}")
    for i in range(4):
        A(f"v_min_u32 v{S+i}, -2, v{S+i}")
    if opt.stamps == 5: A("s_memrealtime s[74:75]")
    A(f"buffer_store_dwordx4 {vr(S,4)}, v{vSA}, {sr(sWS,4)}, s{sST} offen {opt.sth}")
    if opt.dry == 2:
        A(f"s_cmp_eq_u32 s{sWAVE}, 4")
        A("s_cbranch_scc1 L_setup")
    def prefetch():
        N = opt.pfn; PF = 24
        A(f"s_cmp_ge_u32 s{sWAVE}, {opt.pfw}")
        A("s_cbranch_scc1 L_pf_done")
        A(f"s_lshl_b32 s{sT}, s{sH}, 5")
        A(f"s_add_u32 s{sT}, s{sT}, s{sS}")
        A(f"s_lshl_b32 s{sT}, s{sT}, {12 + HF}")
        assert not HF or opt.pf == 2
        A(f"v_lshlrev_b32 v{t0}, {7 if opt.pf == 1 else 6 + HF}, v0")
        for k in range(N): A(f"v_mov_b32 v{PF+k}, -1")
        if opt.pf == 1:
            A("s_mov_b32 exec_hi, 0")
            A(f"s_bitset0_b32 exec_lo, s{sS}")
        else:
            A(f"s_lshl_b32 s{sT2}, s{sS}, 1")
            A(f"s_lshl_b64 {sr(sEX,2)}, 3, s{sT2}")
            A(f"s_andn2_b64 exec, exec, {sr(sEX,2)}")
        if opt.pfw > 1:
            per = (32 if opt.pf == 1 else 64) // opt.pfw
            A(f"s_mul_i32 s{sT2}, s{sWAVE}, {per}")
            A(f"s_lshl_b64 {sr(sEX,2)}, {(1 << per) - 1:#x}, s{sT2}")
            A(f"s_and_b64 exec, exec, {sr(sEX,2)}")
        A(f"s_mov_b32 s{sT2}, 0x40000")
        A.label("L_pf")
        for k in range(N):
            A(f"buffer_load_dword v{PF+k}, v{t0}, {sr(sWS,4)}, s{sT} offen sc1")
            A(f"s_waitcnt vmcnt({N-1})")
            A(f"v_cmpx_eq_u32 vcc, -1, v{PF+(k+1)%N}")
            A("s_cbranch_execz L_pf_done")
            if opt.pfs: A(f"s_sleep {opt.pfs}")
        A(f"s_sub_u32 s{sT2}, s{sT2}, 1")
        A("s_cbranch_scc0 L_pf")
        A.label("L_pf_done")
    if opt.stamps == 5:
        A(f"v_readfirstlane_b32 s72, v{vTICK}")
        A("s_mul_i32 s72, s72, 100")
        A("s_add_u32 s72, s72, s70")
        A("s_addc_u32 s73, s71, 0")
    pacing = opt.bar3 == 1
    if opt.pf and not pacing: prefetch()
    A("s_waitcnt vmcnt(0)")
    if opt.stamps: A("s_memrealtime s[80:81]")
    A("s_barrier")
    if opt.pf and pacing:
        prefetch()
        if opt.stamps:
            A("s_waitcnt vmcnt(0)")
            A("s_memrealtime s[80:81]")
    if opt.stamps: A("s_branch L_stamps")
    A("s_endpgm")

    A.label("L_service")
    A(f"s_load_dwordx2 {sr(sOUT,2)}, s[0:1], 40")
    A(f"s_load_dwordx2 {sr(sDBG,2)}, s[0:1], 48")
    A("v_mov_b32 v2, 0")
    A("v_mov_b32 v3, 0")
    if opt.gw:
        for k in range(2): A(f"ds_write_b64 v2, v[2:3] offset:{TAB+256*NR+8*k}")
        A(f"ds_write_b32 v2, v2 offset:{FLAG}")
    else:
        A(f"ds_write_b64 v2, v[2:3] offset:{TAB+512}")
    A(f"s_mov_b32 s{sOUT+2}, 16384")
    A(f"s_mov_b32 s{sOUT+3}, 0x20000")
    A(f"s_mov_b32 s{sDBG+2}, 256")
    A(f"s_mov_b32 s{sDBG+3}, 0x20000")
    sPO, sPM, sRD, sOO = 40, 41, 42, 46
    A(f"s_lshl_b32 s{sPO}, s{sH}, 5")
    A(f"s_add_u32 s{sPO}, s{sPO}, s{sS}")
    A(f"s_lshl_b32 s{sPO}, s{sPO}, {12 + HF}")
    if HF: A(f"s_add_u32 s{sPM}, s{sPO}, 4096")
    def slot(i, extra=0):
        if HF: return f"s{sPO if i < 2 else sPM} offen offset:{2048*(i&1)+extra}"
        return f"s{sPO} offen offset:{1024*i+extra}"
    A(f"s_lshl_b32 s{sRD}, s{sH}, 5")
    A(f"s_lshr_b32 s{sCNT}, s2, 3")
    A(f"s_lshl_b32 s{sCNT}, s{sCNT}, 8")
    A(f"s_add_u32 s{sCNT}, s{sCNT}, {CNT_OFF:#x}")
    A("v_lshlrev_b32 v1, 4, v0")
    if HF:
        A("v_and_b32 v4, 60, v0")
        A("v_lshl_add_u32 v1, v4, 4, v1")
    for i in range(4): A(f"v_mov_b32 v{4+i}, -1")
    A("s_waitcnt lgkmcnt(0)")
    A("s_barrier")
    A(f"s_load_dwordx2 s[{sCTX[0]}:{sCTX[1]}], {sr(sCP,2)}, 0")
    if opt.lead:
        A(f"s_and_b32 s{sT}, s2, 7")
        A("s_cbranch_scc1 L_nolead")
        A(f"s_mov_b32 s{sT}, s{sPO}")
        for k in range(8):
            for i in range(4):
                A(f"buffer_store_dwordx4 v[4:7], v1, {sr(sWS,4)}, s{sT} offen offset:{1024*i} sc1")
            if k < 7: A(f"s_add_u32 s{sT}, s{sT}, 4096")
        for i in range(2):
            A(f"buffer_store_dwordx4 v[4:7], v1, {sr(sWS,4)}, s{sPM} offen offset:{1024*i} sc1")
        A("s_mov_b64 exec, 1")
        A(f"buffer_store_dword v2, v2, {sr(sWS,4)}, s{sCNT} offen sc1")
        A("v_mov_b32 v3, 1")
        A("s_waitcnt vmcnt(0)")
        A(f"buffer_atomic_add v3, v2, {sr(sDBG,4)}, 0 offen sc1")
        A("s_mov_b64 exec, -1")
        A.label("L_nolead")
        A(f"s_mov_b32 s{sRD}, 0")
    else:
        if not opt.noclear:
            for i in range(4):
                A(f"buffer_store_dwordx4 v[4:7], v1, {sr(sWS,4)}, {slot(i)} {opt.clh}")
        A(f"s_and_b32 s{sT}, s2, 7")
        A("s_cbranch_scc1 L_nolead")
        A("v_lshlrev_b32 v20, 2, v0")
        A(f"buffer_store_dword v2, v20, {sr(sWS,4)}, s{sCNT} offen sc1")
        A.label("L_nolead")
    A("s_waitcnt lgkmcnt(0)")
    ctx_setup(False)
    A(f"s_add_u32 s{sT}, s{sCTX[0]}, 15")
    A(f"s_sub_i32 s{sT}, s{sT}, s{sP0[0]}")
    A(f"s_ashr_i32 s{sT}, s{sT}, 4")
    A(f"s_max_i32 s{sT}, s{sT}, 0")
    A(f"s_lshr_b32 s{sP0[0]}, s{sP0[0]}, 4")
    A(f"s_lshr_b32 s{sP0[1]}, s{sP0[1]}, 4")
    A(f"s_sub_i32 s{sP0[1]}, s{sP0[1]}, s{sT}")
    A(f"v_mov_b32 v8, s{sP0[0]}")
    A(f"v_mov_b32 v9, s{sP0[1]}")
    A(f"v_mov_b32 v10, s{sCTX[0]}")
    A(f"v_mov_b32 v11, s{sCTX[1]}")
    if opt.gw:
        for r in range(NR): A(f"v_add_u32 v{32+r}, {64*r}, v0")
    else:
        A(f"v_lshl_add_u32 v32, v0, 2, s{sG}")
        A("v_add_u32 v33, 256, v32")
    for r in range(NR):
        u = 32 + r; p = 40 + r; n = 48 + r; a = 56 + r
        A(f"v_cmp_le_u32 vcc, s{sT}, v{u}")
        A("s_nop 1")
        A(f"v_cndmask_b32 v{p}, v8, v9, vcc")
        A(f"v_cndmask_b32 v{n}, v10, v11, vcc")
        A(f"v_cndmask_b32 v{a}, 0, 1, vcc")
        A(f"v_add_u32 v{p}, v{p}, v{u}")
        A(f"v_lshlrev_b32 v{u}, 4, v{p}")
        A(f"v_sub_u32 v{n}, v{n}, v{u}")
        A(f"v_med3_i32 v{n}, v{n}, 0, 16")
        A(f"v_mul_u32_u24 v{u}, 5, v{a}")
        A(f"v_lshlrev_b32 v{n}, v{u}, v{n}")
        A(f"v_lshlrev_b32 v{p}, 2, v{p}")
        A(f"v_lshl_add_u32 v{p}, v{a}, 13, v{p}")
        A(f"buffer_load_dword v{a}, v{p}, {sr(sBT,4)}, 0 offen")
    A("v_lshlrev_b32 v20, 2, v0")
    A("v_mov_b32 v3, 1")
    A("s_waitcnt vmcnt(0)")
    A("s_mov_b64 exec, 1")
    if not opt.nordy and not opt.lead: A(f"buffer_atomic_add v3, v2, {sr(sDBG,4)}, s{sRD} offen sc1")
    A("s_mov_b64 exec, -1")
    for r in range(NR):
        n = 48 + r; a = 56 + r
        A(f"v_min_u32 v{a}, 3071, v{a}")
        A(f"v_cmp_ne_u32 vcc, 0, v{n}")
        A(f"v_lshl_or_b32 v{a}, v{a}, 15, v{n}")
        A("s_nop 0")
        A(f"v_cndmask_b32 v{a}, 0, v{a}, vcc")
        A(f"ds_write_b32 v20, v{a} offset:{TAB+256*r}")
    A(f"s_lshr_b32 s{sOO}, s{sS}, 4")
    A(f"s_lshl_b32 s{sOO}, s{sOO}, 13")
    A(f"s_lshl_b32 s{sT}, s{sH}, 10")
    A(f"s_add_u32 s{sOO}, s{sOO}, s{sT}")
    A(f"s_and_b32 s{sT}, s{sS}, 15")
    A(f"s_lshl_b32 s{sT}, s{sT}, 6")
    A(f"s_add_u32 s{sOO}, s{sOO}, s{sT}")
    A(f"s_mov_b32 s{sT2}, 0x10000")
    A("s_mov_b64 exec, 1")
    if opt.nordy: A("s_branch L_rdy_ok")
    if opt.l2rd:
        n = opt.l2rd
        while n > 0:
            A(f"s_sleep {min(n, 127)}"); n -= 127
        A(f"buffer_load_dword v8, v2, {sr(sDBG,4)}, s{sRD} offen")
        A("s_branch L_rdy_chk")
    A.label("L_rdy")
    for i in range(opt.rsleep): A("s_sleep 127")
    A(f"buffer_load_dword v8, v2, {sr(sDBG,4)}, s{sRD} offen sc1")
    A.label("L_rdy_chk")
    A("s_waitcnt vmcnt(0)")
    A(f"v_readfirstlane_b32 s{sT}, v8")
    A(f"s_cmp_ge_u32 s{sT}, 32")
    A("s_cbranch_scc1 L_rdy_ok")
    A(f"s_sub_u32 s{sT2}, s{sT2}, 1")
    A("s_cbranch_scc0 L_rdy")
    A.label("L_rdy_ok")
    A("s_waitcnt lgkmcnt(0)")
    A(f"ds_write_b32 v2, v3 offset:{FLAG}")
    A("s_mov_b64 exec, -1")
    if opt.stamps: A("s_memrealtime s[72:73]")
    sMISS = [48, 50, 52, 54]
    sWT, sB3, sSZ, sOM = 62, 63, 47, 68
    AC, WS_, REF, vOA = 24, 28, 30, 22
    sDRY = 30
    def bar(tag):
        if opt.dry:
            A(f"s_cmp_lg_u32 s{sDRY}, 0")
            A(f"s_cbranch_scc1 L_nb{tag}")
        A("s_barrier")
        if opt.dry: A.label(f"L_nb{tag}")
    if opt.dry:
        A(f"s_mov_b32 s{sDRY}, 1")
        A(f"s_mov_b32 s{sWS+2}, 0")
        A(f"s_mov_b32 s{sOUT+2}, 0")
        A(f"s_mov_b32 s{sWT}, 0x7f800000")
        if opt.dry == 2:
            for r in (vRM, vRO, vSA): A(f"v_mov_b32 v{r}, 0")
            A(f"s_mov_b32 s{sST}, 0")
            A("s_branch L_epi")
        A.label("L_setup")
    else:
        A(f"s_mov_b32 s{sWT}, {f2u(2.0**30):#x}")
    A(f"s_mov_b32 s{sT2}, 0x40000")
    A("s_mov_b32 s60, 0x0c0c0400")
    A("s_mov_b32 s61, 0x04000c0c")
    A(f"s_mov_b32 s{sB3}, 0")
    A(f"s_mov_b32 s{sSZ}, {WS_SIZE:#x}")
    A(f"s_mov_b32 s{sOM}, 0x00ff00ff")
    A(f"s_mov_b32 s{sOM+1}, 0x00ff00ff")
    A(f"s_and_b32 s{sT}, s{sS}, 7")
    A(f"s_lshl_b32 s{sT}, s{sT}, 3")
    A(f"s_lshl_b64 {sr(sEX,2)}, 0xff, s{sT}")
    A(f"s_not_b64 {sr(sEX,2)}, {sr(sEX,2)}")
    A(f"s_lshr_b32 s{sT}, s{sS}, 3")
    for i in range(4):
        A(f"s_cmp_eq_u32 s{sT}, {i}")
        A(f"s_cselect_b64 {sr(sMISS[i],2)}, {sr(sEX,2)}, -1")
    A("v_and_b32 v8, 7, v0")
    A("v_lshrrev_b32 v9, 4, v0")
    A("v_lshlrev_b32 v9, 1, v9")
    A(f"v_lshl_add_u32 v{vOA}, v8, 3, v9")
    A("v_bfe_u32 v9, v0, 3, 2")
    A(f"s_lshr_b32 s{sT}, s{sS}, 2")
    A(f"s_lshl_b32 s56, s{sT}, 5")
    A("v_mov_b32 v10, s56")
    A("v_lshl_add_u32 v11, v9, 3, v10")
    A(f"s_mul_i32 s56, s{sT}, 528")
    A(f"s_and_b32 s{sT}, s{sS}, 3")
    A(f"s_lshl_b32 s{sT}, s{sT}, 7")
    A(f"s_add_u32 s56, s56, s{sT}")
    A("v_mul_u32_u24 v12, 4224, v9")
    A("v_lshl_add_u32 v12, v8, 4, v12")
    A("v_add_u32 v12, s56, v12")
    for i in range(5): A(f"v_mov_b32 v{AC+i}, 0")
    for i in range(16 * opt.ka): A(f"v_mov_b32 v{48 + 16 * opt.kp + i}, -1")
    A("s_waitcnt lgkmcnt(0)")
    bar("2")
    if opt.stamps: A("s_memrealtime s[74:75]")
    KP = opt.kp
    KA = opt.ka
    SETS = [48 + 16 * j for j in range(KP + KA)]
    assert SETS[-1] + 16 <= NV
    def pissue(j, first=False):
        for i in range(4):
            if first:
                A(f"s_mov_b64 exec, {sr(sMISS[i],2)}")
            elif opt.null:
                A(f"s_cmp_lg_u64 {sr(sMISS[i],2)}, 0")
                A(f"s_cselect_b32 s{sWS+2}, s{sSZ}, 0")
                A(f"s_cselect_b64 exec, {sr(sMISS[i],2)}, 1")
            else:
                A(f"s_or_b64 exec, {sr(sMISS[i],2)}, 1")
            A(f"buffer_load_dwordx4 {vr(SETS[j]+4*i,4)}, v1, {sr(sWS,4)}, {slot(i)} {opt.ldh}")
    def aissue(j):
        for i in range(4):
            A(f"s_cmp_lg_u64 {sr(sMISS[i],2)}, 0")
            A(f"s_cselect_b32 s{sWS+2}, s{sSZ}, 0")
            A(f"s_cselect_b64 exec, {sr(sMISS[i],2)}, 1")
            for k in range(2):
                A(f"buffer_atomic_and_x2 {vr(SETS[KP+j]+4*i+2*k,2)}, v1, {sr(sWS,4)}, {slot(i, 8*k)} sc0 sc1")
    def lse(dst, R):
        A(f"v_perm_b32 v{dst}, v{R+1}, v{R}, s60")
        A(f"v_perm_b32 v{dst+1}, v{R+3}, v{R+2}, s61")
    def process(j, i, tag):
        R = SETS[j] + 4 * i
        A(f"s_mov_b64 exec, {sr(sMISS[i],2)}")
        if tag: A(f"s_cbranch_execz L_pc{tag}")
        A(f"v_max3_u32 v8, v{R}, v{R+1}, v{R+2}")
        lse(14, R)
        A(f"v_max_u32 v8, v8, v{R+3}")
        A("v_or_b32 v14, v14, v15")
        A("v_cmpx_ne_u32 vcc, -1, v8")
        A(f"v_sub_f32 v14, v14, v{REF}")
        A("v_exp_f32 v14, v14")
        A(f"s_andn2_b64 {sr(sMISS[i],2)}, {sr(sMISS[i],2)}, vcc")
        for c in range(2):
            A(f"v_pk_fma_f32 {vr(AC+2*c,2)}, {vr(R+2*c,2)}, v[14:15], {vr(AC+2*c,2)} op_sel_hi:[1,0,1]")
        A(f"v_add_f32 v{WS_}, v{WS_}, v14")
        if tag: A.label(f"L_pc{tag}")
    def anymiss(thr=False, tgt="L_atom"):
        if thr and KA:
            for i in range(4): A(f"s_bcnt1_i32_b64 s{56+i}, {sr(sMISS[i],2)}")
            A("s_add_u32 s56, s56, s57")
            A("s_add_u32 s58, s58, s59")
            A("s_add_u32 s56, s56, s58")
            A("s_cmp_eq_u32 s56, 0")
            A("s_cbranch_scc1 L_have")
            A(f"s_cmp_le_u32 s56, {opt.athr * 8}")
            A(f"s_cbranch_scc1 {tgt}")
            return
        A(f"s_or_b64 {sr(sEX,2)}, {sr(sMISS[0],2)}, {sr(sMISS[1],2)}")
        A(f"s_or_b64 {sr(56,2)}, {sr(sMISS[2],2)}, {sr(sMISS[3],2)}")
        A(f"s_or_b64 {sr(sEX,2)}, {sr(sEX,2)}, {sr(56,2)}")
        A("s_cbranch_scc0 L_have")
    def own():
        A("s_mov_b64 exec, -1")
        A(f"ds_read_b128 v[32:35], v10 offset:{MLB}")
        A(f"ds_read_b128 v[36:39], v10 offset:{MLB+16}")
        A(f"ds_read_b64 v[40:41], v11 offset:{MLB}")
        A("ds_read_b128 v[44:47], v12")
        A("s_waitcnt lgkmcnt(2)")
        A(f"v_max3_f32 v{REF}, v32, v34, v36")
        A(f"v_max_f32 v{REF}, v{REF}, v38")
        A("s_mov_b32 exec_hi, 0")
        A("s_waitcnt lgkmcnt(0)")
        A(f"v_sub_f32 v40, v40, v{REF}")
        A("v_exp_f32 v40, v40")
        A("s_nop 0")
        for c in range(2):
            A(f"v_pk_mul_f32 {vr(AC+2*c,2)}, {vr(44+2*c,2)}, v[40:41] op_sel_hi:[1,0]")
        A(f"v_mul_f32 v{WS_}, v40, v41")
    if opt.early:
        if opt.pdelay: A(f"s_sleep {opt.pdelay}")
        pissue(0, True)
        own()
    else:
        own()
        bar("3")
        A(f"s_mov_b32 s{sB3}, 1")
        pissue(0, True)
    for i in range(4):
        A(f"s_waitcnt vmcnt({3-i})")
        process(0, i, None)
    if opt.early and opt.bar3 == 1:
        anymiss()
        A("s_barrier")
        A(f"s_mov_b32 s{sB3}, 1")
        if KA: anymiss(True)
    else:
        anymiss(True)
    for j in range(KP - 1):
        pissue(j)
        if opt.stag: A(f"s_sleep {opt.stag}")
    A.label("L_poll")
    for j in range(KP):
        pissue((j + KP - 1) % KP)
        A(f"s_waitcnt vmcnt({4 * (KP - 1)})")
        for i in range(4):
            process(j, i, f"{j}_{i}")
        anymiss(True, f"L_tr{j}" if KP == 2 and KA == 2 else "L_atom")
        if opt.psleep: A(f"s_sleep {opt.psleep}")
    A(f"s_sub_u32 s{sT2}, s{sT2}, 1")
    A("s_cbranch_scc0 L_poll")
    if KA:
        A("s_branch L_have")
        if KP == 2 and KA == 2:
            for j in range(2):
                A.label(f"L_tr{j}")
                aissue(0)
                A("s_waitcnt vmcnt(8)")
                for i in range(4):
                    process(1 - j, i, f"t{j}_{i}")
                anymiss()
                if opt.astag > 2: A(f"s_sleep {opt.astag - 2}")
                A("s_branch L_apoll")
        A.label("L_atom")
        for j in range(KA - 1):
            aissue(j)
            if opt.astag: A(f"s_sleep {opt.astag}")
        A.label("L_apoll")
        for j in range(KA):
            aissue((j + KA - 1) % KA)
            A(f"s_waitcnt vmcnt({8 * (KA - 1)})")
            for i in range(4):
                process(KP + j, i, f"a{j}_{i}")
            anymiss()
        A(f"s_sub_u32 s{sT2}, s{sT2}, 1")
        A("s_cbranch_scc0 L_apoll")
    DPP8 = "row_ror:8 row_mask:0xf bank_mask:0xf"
    A.label("L_have")
    if opt.stamps:
        A("s_memrealtime s[76:77]")
        A(f"s_sub_u32 s78, 0x40000, s{sT2}")
    A("s_mov_b64 exec, -1")
    A(f"v_mov_b32 v9, v{WS_}")
    A(f"v_permlane32_swap_b32 v{AC}, v{AC+2}")
    A(f"v_permlane32_swap_b32 v{AC+1}, v{AC+3}")
    A(f"v_permlane32_swap_b32 v{WS_}, v9")
    A(f"v_add_f32 v{AC}, v{AC}, v{AC+2}")
    A(f"v_add_f32 v{AC+1}, v{AC+1}, v{AC+3}")
    A(f"v_add_f32 v{WS_}, v{WS_}, v9")
    A(f"v_mov_b32 v9, v{WS_}")
    A(f"v_permlane16_swap_b32 v{AC}, v{AC+1}")
    A("s_nop 0")
    A(f"v_permlane16_swap_b32 v{WS_}, v9")
    A(f"v_add_f32 v{AC}, v{AC}, v{AC+1}")
    A("s_nop 0")
    A(f"v_add_f32 v{WS_}, v{WS_}, v9")
    A(f"v_add_f32_dpp v{AC}, v{AC}, v{AC} {DPP8}")
    A("s_nop 0")
    A(f"v_add_f32_dpp v{WS_}, v{WS_}, v{WS_} {DPP8}")
    A(f"v_rcp_f32 v9, v{WS_}")
    A(f"v_cmp_lt_f32 vcc, s{sWT}, v{WS_}")
    A(f"v_mul_f32 v{AC}, v{AC}, v9")
    A("s_cbranch_vccnz L_fall")
    A(f"s_mov_b64 exec, {sr(sOM,2)}")
    A(f"v_cvt_pk_bf16_f32 v{AC}, v{AC}, v{AC}")
    A(f"buffer_store_short v{AC}, v{vOA}, {sr(sOUT,4)}, s{sOO} offen")
    if opt.dry:
        A(f"s_cmp_lg_u32 s{sDRY}, 0")
        A("s_cbranch_scc1 L_real")
    if opt.stamps:
        A("s_waitcnt vmcnt(0)")
        A("s_memrealtime s[80:81]")
    A(f"s_cmp_lg_u32 s{sB3}, 0")
    A("s_cbranch_scc1 L_fin")
    A("s_barrier")
    A.label("L_fin")
    if opt.diag:
        A.label("L_diag")
        A("s_memrealtime s[72:73]")
        A("s_waitcnt lgkmcnt(0)")
        A("s_sub_u32 s72, s72, s70")
        A(f"s_cmp_lt_u32 s72, {opt.diag}")
        A("s_cbranch_scc1 L_diag")
    if opt.stamps:
        A("s_mul_i32 s78, s78, 100")
        A("s_waitcnt lgkmcnt(0)")
        A("s_add_u32 s78, s78, s70")
        A("s_addc_u32 s79, s71, 0")
        A.label("L_stamps")
        A("s_mov_b64 exec, -1")
        A("s_waitcnt lgkmcnt(0)")
        A(f"s_add_u32 s84, s{sWS}, 0x4000000")
        A(f"s_addc_u32 s85, s{sWS+1}, 0")
        A("s_and_b32 s85, s85, 0xffff")
        A("s_mov_b32 s86, 0x100000")
        A("s_mov_b32 s87, 0x20000")
        A("s_mul_i32 s88, s2, 5")
        A(f"s_add_u32 s88, s88, s{sWAVE}")
        A("s_mul_i32 s88, s88, 48")
        for j in range(6):
            A(f"v_mov_b32 v0, s{70+2*j}")
            A(f"v_mov_b32 v1, s{71+2*j}")
            A("v_mov_b32 v2, 0")
            A("s_mov_b64 exec, 1")
            A(f"buffer_store_dwordx2 v[0:1], v2, s[84:87], s88 offen offset:{8*j}")
            A("s_waitcnt vmcnt(0)")
    A.label("L_end")
    A("s_endpgm")
    A.label("L_fall")
    A("s_mov_b64 exec, -1")
    A(f"s_mov_b32 s{sWS+2}, s{sSZ}")
    A(f"s_mov_b32 s{sWT}, 0x7f800000")
    A(f"s_cmp_lg_u32 s{sB3}, 0")
    A("s_cbranch_scc1 L_fall1")
    A("s_barrier")
    A(f"s_mov_b32 s{sB3}, 1")
    A.label("L_fall1")
    A("s_waitcnt vmcnt(0)")
    R0 = SETS[0]
    for i in range(4):
        A(f"buffer_load_dwordx4 {vr(R0+4*i,4)}, v1, {sr(sWS,4)}, {slot(i)} {opt.ldh}")
    A("s_waitcnt vmcnt(0)")
    for i in range(4): lse(32 + 2*i, R0 + 4*i)
    for i in range(4): A(f"v_or_b32 v{32+2*i}, v{32+2*i}, v{33+2*i}")
    A("v_max3_f32 v8, v32, v34, v36")
    A("v_max_f32 v8, v8, v38")
    A("s_nop 1")
    A(f"v_max_f32_dpp v8, v8, v8 {DPP8}")
    for sw in ("v_permlane16_swap_b32", "v_permlane32_swap_b32"):
        A("v_mov_b32 v9, v8")
        A("s_nop 1")
        A(f"{sw} v8, v9")
        A("s_nop 1")
        A("v_max_f32 v8, v8, v9")
    for i in range(4): A(f"v_sub_f32 v{32+2*i}, v{32+2*i}, v8")
    for i in range(4): A(f"v_exp_f32 v{32+2*i}, v{32+2*i}")
    A("s_nop 0")
    for c in range(4): A(f"v_mul_f32 v{AC+c}, v32, v{R0+c}")
    A(f"v_add_f32 v{WS_}, v32, v34")
    for i in range(1, 4):
        for c in range(4): A(f"v_fmac_f32 v{AC+c}, v{32+2*i}, v{R0+4*i+c}")
        if i > 1: A(f"v_add_f32 v{WS_}, v{WS_}, v{32+2*i}")
    A("s_branch L_have")
    if opt.dry:
        A.label("L_real")
        A("s_waitcnt vmcnt(0)")
        A("s_mov_b64 exec, -1")
        A(f"s_mov_b32 s{sDRY}, 0")
        A(f"s_mov_b32 s{sWS+2}, {WS_SIZE:#x}")
        A(f"s_mov_b32 s{sOUT+2}, 16384")
        A(f"s_mov_b32 s{sWT}, {f2u(2.0**30):#x}")
        A("s_branch L_setup")

    acc = (NV + 3) // 4 * 4
    A.raw('.section .rodata,"a"')
    A.raw(".p2align 6")
    A.raw(f""".amdhsa_kernel {NAME}_kernel
  .amdhsa_next_free_vgpr {NV}
  .amdhsa_next_free_sgpr {100 if opt.stamps or opt.diag else 76}
  .amdhsa_accum_offset {acc}
  .amdhsa_group_segment_fixed_size 0
  .amdhsa_kernarg_size 64
  .amdhsa_user_sgpr_count 2
  .amdhsa_user_sgpr_kernarg_segment_ptr 1
  .amdhsa_system_sgpr_workgroup_id_x 1
.end_amdhsa_kernel""")
    return A.text()

if __name__ == "__main__":
    p = argparse.ArgumentParser()
    p.add_argument("--D", default="5")
    p.add_argument("--TD", default="7")
    p.add_argument("--dyn", type=int, default=1)
    p.add_argument("--rt", type=int, default=128)
    p.add_argument("--psleep", type=int, default=0)
    p.add_argument("--noclear", type=int, default=0)
    p.add_argument("--nordy", type=int, default=0)
    p.add_argument("--rsleep", type=int, default=1)
    p.add_argument("--csleep", type=int, default=0)
    p.add_argument("--hrot", type=int, default=0)
    p.add_argument("--lead", type=int, default=0)
    p.add_argument("--l2rd", type=int, default=0)
    p.add_argument("--sth", default="sc1")
    p.add_argument("--ldh", default="sc1")
    p.add_argument("--clh", default="sc1")
    p.add_argument("--astep", type=int, default=2)
    p.add_argument("--probe", type=int, default=0, help="log2 of the probe period in items")
    p.add_argument("--thr", type=int, default=20)
    p.add_argument("--aprobe", type=int, default=0)
    p.add_argument("--hm", default="", help="4 binary masks (head & 3): steps one deeper")
    p.add_argument("--wmap", type=int, default=0)
    p.add_argument("--atx", type=int, default=0)
    p.add_argument("--atop", default="add_f64")
    p.add_argument("--atsc", default="sc1")
    p.add_argument("--oh", default="")
    p.add_argument("--kp", type=int, default=2)
    p.add_argument("--stag", type=int, default=0)
    p.add_argument("--bar3", type=int, default=0)
    p.add_argument("--pdelay", type=int, default=0)
    p.add_argument("--wplus", type=int, default=0)
    p.add_argument("--hint", default="nt")
    p.add_argument("--lds", type=int, default=0)
    p.add_argument("--stamps", type=int, default=0)
    p.add_argument("--diag", type=int, default=0)
    p.add_argument("--pg", type=int, default=0)
    p.add_argument("--ord", type=int, default=0)
    p.add_argument("--early", type=int, default=1)
    p.add_argument("--null", type=int, default=1)
    p.add_argument("--otouch", type=int, default=0)
    p.add_argument("--dry", type=int, default=0)
    p.add_argument("--ka", type=int, default=0)
    p.add_argument("--gw", type=int, default=0)
    p.add_argument("--ng", type=int, default=4)
    p.add_argument("--half", type=int, default=0)
    p.add_argument("--pf", type=int, default=0)
    p.add_argument("--pfn", type=int, default=10)
    p.add_argument("--pfs", type=int, default=1)
    p.add_argument("--pfw", type=int, default=1)
    p.add_argument("--athr", type=int, default=8)
    p.add_argument("--astag", type=int, default=3)
    p.add_argument("-o", default="/dev/stdout")
    o = p.parse_args()
    if o.hint: o.hint = " " + o.hint
    open(o.o, "w").write(gen(o))
```

```python
import sys, argparse, struct

NAME = "standalone__paged_block_table_kv_radixattention__decode"
KV_BYTES = 3072 * 32768
SCALE = (128 ** -0.5) * 1.4426950408889634
def f2u(x): return struct.unpack("<I", struct.pack("<f", x))[0]
NINF = 0xff800000
ML_OFF = 0x100000
CNT_OFF = 0x200000
WS_SIZE = 0x300000

class Asm:
    def __init__(self): self.l = []
    def __call__(self, s): self.l.append("    " + s)
    def label(self, s): self.l.append(s + ":")
    def raw(self, s): self.l.append(s)
    def text(self): return "\n".join(self.l) + "\n"

def vr(a, n): return f"v[{a}:{a+n-1}]"
def sr(a, n): return f"s[{a}:{a+n-1}]"

def gen(opt):
    A = Asm()
    hint = opt.hint
    DI = 7
    MLB = 4 * 8 * 132 * 4
    TAB = MLB + 256
    NR = 5 if opt.gw else 2
    NG = opt.ng if opt.gw else 4
    assert opt.rt <= 128
    FLAG = TAB + (64 * NR + (4 if opt.gw else 1)) * 4
    CNTL = FLAG + 4
    MSK = FLAG + 8
    LDS = FLAG + (12 if opt.fb else 4)
    PAT = [int(x, 2) for x in opt.pat.split(",")]
    assert len(PAT) == 8
    header = f"""; Paged-KV (block table, shared radix prefix) GQA decode attention: split-KV with in-kernel combine.
; @launch grid=(256,1,1) block=(320,1,1) lds={max(LDS, opt.lds)}
.amdgcn_target "amdgcn-amd-amdhsa--gfx950"
.text
.globl {NAME}_kernel{chr(10) + ".p2align 12" if opt.pg else ""}
.p2align 8
.type {NAME}_kernel,@function
{NAME}_kernel:"""
    A.raw(header)
    sK, sV, sQ, sBT, sWS = 8, 12, 16, 20, 24
    sCP = 28
    sCTX = [30, 31]
    sH, sS, sWAVE, sW, sMASK, sLANE, sDESC, sOFF = 32, 33, 34, 35, 36, 37, 38, 39
    sN = [40, 41]; sNN = 42
    sT, sT2, sSIZE = 43, 44, 45
    sZ = [46, 47]
    sTHR = [48, 49]; sFLOOR = [50, 51]
    sMK = [52, 54]
    sQO = [56, 57]
    sEX = 58
    sG, sCNT = 60, 61
    sP0 = [62, 63]
    sOUT, sDBG = 64, 4
    vK, vK2, vV, vV2, vM0, vM1, vDESC, vC, vNINF = 1, 2, 3, 4, 5, 6, 7, 8, 9
    vTOK = 10
    NM = [14, 16]; L = [15, 17]
    T = 18
    Q = [24, 28]
    O = [32, 40]
    D = [48, 52]
    X = [56, 60]
    B = [64, 72]
    RING = 80
    vTICK, vZERO, vPRB = RING + 32, RING + 33, RING + 34
    vEA, vEB, vEM, vRM, vRO, vSA, vPA, vOA2, vRF, vFB, vONE = range(RING + 35, RING + 46)
    NV = max(RING + 46, 48 + 16 * (opt.kp + opt.ka))
    sX = 92 if (opt.stamps or opt.diag) else 70
    sPERM, sST = sX, sX + 4
    sPO2, sOO2, sMODE = sX + 5, sX + 6, sX + 7
    sNEED, sDEEP, sPEND = 68, 69, 3
    def piece(p): return vr(RING + 4 * p, 4)
    t0, t1, t2, t3, t4, t5 = range(T, T + 6)

    A("s_cmp_ge_u32 s2, 256")
    A("s_cbranch_scc1 L_end")
    if opt.stamps or opt.diag: A("s_memrealtime s[70:71]")
    A(f"s_load_dwordx2 {sr(sBT,2)}, s[0:1], 24")
    A(f"s_load_dwordx2 {sr(sQ,2)}, s[0:1], 0")
    A(f"s_load_dwordx2 {sr(sK,2)}, s[0:1], 8")
    A(f"s_load_dwordx2 {sr(sV,2)}, s[0:1], 16")
    A(f"s_load_dwordx2 {sr(sCP,2)}, s[0:1], 32")
    A(f"s_load_dwordx2 {sr(sWS,2)}, s[0:1], 56")
    if opt.mw: A(f"s_load_dwordx2 {sr(sOUT,2)}, s[0:1], 40")
    if opt.hx:
        A("s_and_b32 s43, s2, 7")
        A("s_bfe_u32 s44, s2, 0x30003")
        A("s_and_b32 s2, s2, 0xc0")
        A("s_lshl3_add_u32 s2, s43, s2")
        A("s_add_u32 s2, s2, s44")
    A(f"v_lshrrev_b32 v{t0}, 6, v0")
    A("v_and_b32 v0, 63, v0")
    A(f"v_readfirstlane_b32 s{sWAVE}, v{t0}")
    A(f"s_bfe_u32 s{sH}, s2, 0x30003")
    if opt.hrot:
        A(f"s_add_u32 s{sH}, s{sH}, {opt.hrot}")
        A(f"s_and_b32 s{sH}, s{sH}, 7")
    A(f"s_lshr_b32 s{sG}, s2, 6")
    A(f"s_lshl_b32 s{sS}, s{sG}, 3")
    A(f"s_and_b32 s{sT}, s2, 7")
    A(f"s_add_u32 s{sS}, s{sS}, s{sT}")
    for s, size in ((sBT, 16384), (sWS, WS_SIZE)):
        A(f"s_mov_b32 s{s+2}, {size}")
        A(f"s_mov_b32 s{s+3}, 0x20000")
    A(f"s_cmp_eq_u32 s{sWAVE}, 4")
    A("s_cbranch_scc1 L_service")
    if opt.wmap == 0:
        A(f"s_lshl_b32 s{sW}, s{sWAVE}, 5")
        A(f"s_add_u32 s{sW}, s{sW}, s{sS}")
    elif opt.wmap == 1:
        A(f"s_lshl_b32 s{sW}, s{sS}, 2")
        A(f"s_add_u32 s{sW}, s{sW}, s{sWAVE}")
    elif opt.wmap == 2:
        A(f"s_and_b32 s{sW}, s2, 7")
        A(f"s_lshl_b32 s{sW}, s{sW}, 2")
        A(f"s_add_u32 s{sW}, s{sW}, s{sG}")
        A(f"s_lshl_b32 s{sW}, s{sW}, 2")
        A(f"s_add_u32 s{sW}, s{sW}, s{sWAVE}")
    elif opt.wmap == 3:
        A(f"s_lshl_b32 s{sW}, s{sWAVE}, 5")
        A(f"s_add_u32 s{sW}, s{sW}, s{sS}")
        A(f"s_lshl_b32 s{sT}, s{sH}, 4")
        A(f"s_add_u32 s{sW}, s{sW}, s{sT}")
        A(f"s_and_b32 s{sW}, s{sW}, 127")
    for s, size in ((sQ, 16384), (sK, KV_BYTES), (sV, KV_BYTES)):
        A(f"s_mov_b32 s{s+2}, {size}")
        A(f"s_mov_b32 s{s+3}, 0x20000")
    pB, pJ, pBT, pTOK, pQ, pPH = X[0], X[0] + 1, X[0] + 2, X[0] + 3, X[1], X[1] + 1
    A(f"v_and_b32 v{pB}, 1, v0")
    A(f"v_lshrrev_b32 v{pJ}, 1, v0")
    A(f"v_lshlrev_b32 v{pBT}, 13, v{pB}")
    A(f"v_lshl_add_u32 v{pBT}, v{pJ}, 9, v{pBT}")
    A(f"s_lshl_b32 s{sT}, s{sW}, 2")
    A(f"v_and_b32 v{t0}, 15, v0")
    A(f"v_lshrrev_b32 v{t1}, 4, v0")
    A(f"v_lshrrev_b32 v{t2}, 2, v{t0}")
    A(f"v_and_b32 v{t3}, 3, v0")
    A(f"v_lshlrev_b32 v{t4}, 6, v{t1}")
    A(f"v_lshl_add_u32 v{t4}, v{t3}, 4, v{t4}")
    A(f"v_lshl_add_u32 v{pQ}, v{t2}, 8, v{t4}")
    A(f"s_lshl_b32 s{sT2}, s{sH}, 8")
    A(f"s_lshl_b32 s{sQO[0]}, s{sH}, 10")
    A(f"s_add_u32 s{sQO[1]}, s{sQO[0]}, 8192")
    A(f"v_lshl_add_u32 v{vK}, v{t2}, 13, v{t4}")
    A(f"v_add_u32 v{vK}, s{sT2}, v{vK}")
    A(f"v_add_u32 v{vK2}, 4096, v{vK}")
    A(f"v_lshlrev_b32 v{vV}, 13, v{t1}")
    A(f"v_lshl_add_u32 v{vV}, v{t0}, 4, v{vV}")
    A(f"v_add_u32 v{vV}, s{sT2}, v{vV}")
    A(f"v_add_u32 v{vV2}, 4096, v{vV}")
    A(f"s_lshl_b32 s{sOFF}, s{sW}, 15")
    A(f"s_mov_b32 s{sSIZE}, {KV_BYTES}")
    A(f"s_mov_b32 s{sDEEP}, 0")
    A(f"s_mov_b32 s{sNEED}, 0")
    A(f"s_mov_b32 s{sPEND}, 0")
    if opt.hm:
        assert not opt.probe
        hm = [int(x, 2) for x in opt.hm.split(",")]
        word = sum(m << (8 * i) for i, m in enumerate(hm))
        A(f"s_lshl_b32 s{sPEND}, s{sH}, 3")
        if len(hm) == 4:
            A(f"s_lshr_b32 s{sPEND}, {word:#x}, s{sPEND}")
        else:
            A(f"s_mov_b32 s{sEX}, {word & 0xffffffff:#x}")
            A(f"s_mov_b32 s{sEX+1}, {word >> 32:#x}")
            A(f"s_lshr_b64 {sr(sEX,2)}, {sr(sEX,2)}, s{sPEND}")
            A(f"s_mov_b32 s{sPEND}, s{sEX}")
    if opt.fb: A(f"s_mov_b32 s{sPEND}, {PAT[opt.n0]}")
    if opt.stamps in (2, 4): A("s_mov_b32 s90, 0")

    def issue(p):
        p &= 7
        i = p & 3
        if p < 4:
            A(f"buffer_load_dwordx4 {piece(p)}, v{vK if i < 2 else vK2}, {sr(sK,4)}, s{sOFF} offen offset:{2048*(i&1)}{hint}")
        else:
            A(f"buffer_load_dwordx4 {piece(p)}, v{vV if i < 2 else vV2}, {sr(sV,4)}, s{sOFF} offen offset:{2048*(i&1)}{hint}")

    def ctx_setup(zflags):
        for b in range(2):
            A(f"s_cmp_lt_i32 s{sCTX[b]}, 1")
            if zflags: A(f"s_cselect_b32 s{sZ[b]}, 1, 0")
            A(f"s_cselect_b32 s{sCTX[b]}, 0x8000, s{sCTX[b]}")
            A(f"s_min_u32 s{sCTX[b]}, s{sCTX[b]}, 0x8000")
        if not opt.dyn:
            for b in range(2): A(f"s_mov_b32 s{sP0[b]}, 0x8000")
            return
        for b in range(2):
            A(f"s_and_b32 s{sP0[b]}, s{sCTX[b]}, 0xf800")
        A(f"s_add_u32 s{sT}, s{sCTX[0]}, s{sCTX[1]}")
        A(f"s_sub_u32 s{sT}, s{sT}, s{sP0[0]}")
        A(f"s_sub_u32 s{sT}, s{sT}, s{sP0[1]}")
        A(f"s_cmp_lt_u32 s{sT}, {opt.rt * 16}")
        A(f"s_cselect_b32 s{sT}, 2048, 0")
        A(f"s_cmp_lt_u32 s{sP0[0]}, s{sP0[1]}")
        A(f"s_cselect_b32 s{sT2}, 0, s{sT}")
        A(f"s_cselect_b32 s{sT}, s{sT}, 0")
        A(f"s_sub_i32 s{sP0[0]}, s{sP0[0]}, s{sT2}")
        A(f"s_sub_i32 s{sP0[1]}, s{sP0[1]}, s{sT}")
        A(f"s_max_i32 s{sT}, s{sP0[0]}, s{sP0[1]}")
        A(f"s_cmp_lt_i32 s{sT}, 4096")
        for b in range(2):
            A(f"s_cselect_b32 s{sP0[b]}, 0x8000, s{sP0[b]}")

    A("s_waitcnt lgkmcnt(0)")
    order = {0: "b c q0 q1 0 1 2 3 4 5 6", 1: "0 1 b c 2 q0 q1 3 4 5 6", 2: "0 b c 1 2 q0 q1 3 4 5 6", 3: "c 0 1 2 b q0 q1 3 4 5 6", 4: "b c 0 1 2 q0 q1 3 4 5 6"}[opt.ord].split()
    vm = [o for o in order if o != "c"]
    W_BT = len(vm) - 1 - vm.index("b")
    W_Q = len(vm) - 1 - vm.index("q1")
    for o in order:
        if o == "b": A(f"buffer_load_dword v{pPH}, v{pBT}, {sr(sBT,4)}, s{sT} offen")
        elif o == "c": A(f"s_load_dwordx2 s[{sCTX[0]}:{sCTX[1]}], {sr(sCP,2)}, 0")
        elif o[0] == "q": A(f"buffer_load_dwordx4 {vr(Q[int(o[1])],4)}, v{pQ}, {sr(sQ,4)}, s{sQO[int(o[1])]} offen")
        else: issue(int(o))
    if opt.stamps: A("s_memrealtime s[72:73]")
    for i in range(4):
        A(f"v_lshl_add_u32 v{vTOK+i}, v{t1}, 2, {i}")
    A(f"v_mov_b32 v{vC}, {f2u(SCALE):#x}")
    A(f"v_mov_b32 v{vNINF}, {NINF:#x}")
    A(f"v_mov_b32 v{vTICK}, {0x1000 if opt.gw else 128}")
    A(f"v_mov_b32 v{vZERO}, 0")
    if opt.fb: A(f"v_mov_b32 v{vONE}, 1")
    if opt.xm: A(f"s_mov_b32 s{sMODE}, 0")
    A(f"v_and_b32 v{t4}, 1, v{t3}")
    A(f"v_lshlrev_b32 v{t4}, 4, v{t4}")
    A(f"v_mov_b32 v{t5}, 0xffff")
    A(f"v_lshlrev_b32 v{t5}, v{t4}, v{t5}")
    A(f"v_cmp_gt_u32 vcc, 2, v{t3}")
    A(f"s_lshl_b32 s{sT}, s{sW}, 4")
    A(f"v_lshlrev_b32 v{pTOK}, 11, v{pJ}")
    A(f"v_cndmask_b32 v{vM0}, 0, v{t5}, vcc")
    A(f"v_xor_b32 v{vM1}, v{vM0}, v{t5}")
    A(f"v_add_u32 v{pTOK}, s{sT}, v{pTOK}")
    for b in range(2):
        for i in range(8):
            A(f"v_mov_b32 v{O[b]+i}, 0")
        A(f"v_mov_b32 v{NM[b]}, 0")
        A(f"v_mov_b32 v{L[b]}, 0")
        A(f"s_mov_b32 s{sTHR[b]}, {NINF:#x}")
        A(f"s_mov_b32 s{sFLOOR[b]}, {NINF:#x}")
    A(f"s_lshl_b32 s{sT}, s{sWAVE}, 3")
    A(f"v_add_u32 v{t0}, s{sT}, v{t2}")
    A(f"v_mul_u32_u24 v{vEA}, 132, v{t0}")
    A(f"v_lshl_add_u32 v{vEA}, v{t1}, 5, v{vEA}")
    A(f"v_add_lshl_u32 v{vEA}, v{vEA}, v{t3}, 2")
    A(f"v_add_u32 v{vEB}, {4*132*4}, v{vEA}")
    A(f"v_lshrrev_b32 v{t0}, 5, v0")
    A(f"v_lshl_add_u32 v{t4}, v{t0}, 2, v{t2}")
    A(f"v_lshl_add_u32 v{vEM}, v{t4}, 5, s{sT}")
    A(f"s_lshl_b32 s{sT}, s{sWAVE}, 1")
    A(f"v_add_u32 v{t0}, s{sT}, v{t0}")
    A(f"v_lshlrev_b32 v{vRM}, 5, v{t0}")
    A(f"v_and_b32 v{t4}, 31, v0")
    A(f"v_mul_u32_u24 v{vRO}, 528, v{t0}")
    A(f"v_lshl_add_u32 v{vRO}, v{t4}, 4, v{vRO}")
    A(f"v_lshrrev_b32 v{t5}, 3, v{t4}")
    A(f"v_lshl_add_u32 v{t5}, v{t0}, 2, v{t5}")
    A(f"v_and_b32 v{t4}, 7, v{t4}")
    HF = opt.half
    A(f"v_lshlrev_b32 v{vSA}, {12 + HF}, v{t5}")
    if opt.mw == 1:
        A(f"v_lshrrev_b32 v{t5}, 1, v{t4}")
        A(f"v_lshl_add_u32 v{vSA}, v{t5}, 10, v{vSA}")
        A(f"v_and_b32 v{t4}, 1, v0")
    A(f"v_lshl_add_u32 v{vSA}, v{t4}, 4, v{vSA}")
    if opt.mw:
        if opt.mw == 1:
            A(f"v_lshlrev_b32 v{vPA}, 4, v0")
        else:
            A(f"v_and_b32 v{t4}, 1, v0")
            A(f"v_lshlrev_b32 v{vPA}, 7, v{pJ}")
            A(f"v_lshl_add_u32 v{vPA}, v{t4}, 4, v{vPA}")
        A(f"v_lshlrev_b32 v{vOA2}, 1, v{t1}")
        A(f"v_lshl_add_u32 v{vOA2}, v{t4}, 3, v{vOA2}")
        A(f"s_lshl_b32 s{sPO2}, s{sH}, 5")
        A(f"s_add_u32 s{sPO2}, s{sPO2}, s{sS}")
        A(f"s_lshl_b32 s{sPO2}, s{sPO2}, 12")
        A(f"s_lshl_b32 s{sT}, s{sWAVE}, {10 if opt.mw == 1 else 5}")
        A(f"s_add_u32 s{sPO2}, s{sPO2}, s{sT}")
        A(f"s_lshr_b32 s{sOO2}, s{sS}, 4")
        A(f"s_lshl_b32 s{sOO2}, s{sOO2}, 13")
        A(f"s_add_u32 s{sOO2}, s{sOO2}, s{sQO[0]}")
        A(f"s_and_b32 s{sT}, s{sS}, 15")
        A(f"s_lshl2_add_u32 s{sT}, s{sT}, s{sWAVE}")
        A(f"s_lshl4_add_u32 s{sOO2}, s{sT}, s{sOO2}")
        A(f"s_lshr_b32 s{sT}, s{sS}, 2")
        A(f"s_lshl_b32 s{sT}, s{sT}, 5")
        A(f"v_mov_b32 v{vRF}, s{sT}")
        A(f"s_mov_b32 s{sOUT+2}, 16384")
        A(f"s_mov_b32 s{sOUT+3}, 0x20000")
    if HF:
        A(f"v_and_b32 v{t4}, 4, v{t4}")
        A(f"v_lshl_add_u32 v{vSA}, v{t4}, 4, v{vSA}")
    A(f"s_lshl_b32 s{sST}, s{sH}, {17 + HF}")
    A(f"s_lshl_b32 s{sT}, s{sS}, {5 if opt.mw == 1 else 7 + HF}")
    A(f"s_add_u32 s{sST}, s{sST}, s{sT}")
    for j in range(4):
        A(f"s_mov_b32 s{sPERM+j}, {0x07060500 + j:#x}")
    A(f"v_cmp_eq_u32 vcc, 1, v{pB}")
    if opt.gw:
        A(f"s_add_u32 s{sG}, s{sG}, s{sWAVE}")
        A(f"s_and_b32 s{sG}, s{sG}, {NG - 1}")
        A(f"s_lshl_b32 s{sCNT}, s{sG}, 3")
        A(f"s_bfe_u32 s{sT}, s2, 0x30003")
        A(f"s_add_u32 s{sCNT}, s{sCNT}, s{sT}")
        A(f"s_lshl_b32 s{sG}, s{sG}, 2")
    else:
        A(f"s_lshr_b32 s{sCNT}, s2, 3")
    A(f"s_lshl_b32 s{sCNT}, s{sCNT}, 8")
    A(f"s_add_u32 s{sCNT}, s{sCNT}, {CNT_OFF:#x}")
    A("s_barrier")
    A("s_waitcnt lgkmcnt(0)")
    ctx_setup(True)
    for b in range(2):
        A(f"s_min_u32 s{sCTX[b]}, s{sCTX[b]}, s{sP0[b]}")
    A(f"v_mov_b32 v{t0}, s{sCTX[0]}")
    A(f"v_mov_b32 v{t2}, s{sCTX[1]}")
    A(f"v_cndmask_b32 v{t4}, v{t0}, v{t2}, vcc")
    A(f"v_cndmask_b32 v{t2}, v{t2}, v{t0}, vcc")
    A(f"v_sub_u32 v{t4}, v{t4}, v{pTOK}")
    A(f"v_sub_u32 v{t2}, v{t2}, v{pTOK}")
    A(f"v_med3_i32 v{t4}, v{t4}, 0, 16")
    A(f"v_med3_i32 v{t2}, v{t2}, 0, 16")
    A(f"v_lshlrev_b32 v{t0}, 5, v{t4}")
    A(f"v_lshl_or_b32 v{t2}, v{t2}, 5, v{t4}")
    A(f"v_cndmask_b32 v{t4}, v{t4}, v{t0}, vcc")
    A(f"v_cndmask_b32 v{t2}, v{t2}, v{vZERO}, vcc")
    A(f"v_cmp_gt_u32 {sr(sEX,2)}, 32, v0")
    A(f"s_waitcnt vmcnt({W_BT})")
    A(f"v_min_u32 v{pPH}, 3071, v{pPH}")
    A("s_nop 1")
    A(f"v_mov_b32_dpp v{t5}, v{pPH} quad_perm:[1,0,3,2] row_mask:0xf bank_mask:0xf")
    A(f"v_cmp_eq_u32 vcc, v{t5}, v{pPH}")
    A("s_nop 1")
    A(f"v_cndmask_b32 v{t2}, v{t4}, v{t2}, vcc")
    A(f"v_cndmask_b32 v{t2}, v{vZERO}, v{t2}, {sr(sEX,2)}")
    A(f"v_cmp_ne_u32 vcc, 0, v{t2}")
    A(f"v_lshl_or_b32 v{vDESC}, v{pPH}, 15, v{t2}")
    A(f"s_mov_b32 s{sT}, s{sOFF}")
    A(f"s_mov_b32 s{sMASK}, vcc_lo")

    def static_pick():
        A(f"s_ff1_i32_b32 s{sLANE}, s{sMASK}")
        A(f"s_bitset0_b32 s{sMASK}, s{sLANE}")
        A(f"v_readlane_b32 s{sDESC}, v{vDESC}, s{sLANE}")
    def unpack():
        A(f"s_and_b32 s{sOFF}, s{sDESC}, 0xffff8000")
        A(f"s_and_b32 s{sNN}, s{sDESC}, 0x3ff")
        A(f"s_cselect_b32 s{sK+2}, s{sSIZE}, 0")
        A(f"s_cselect_b32 s{sV+2}, s{sSIZE}, 0")

    static_pick(); unpack()
    A("s_cbranch_scc0 L_done")
    A(f"s_cmp_eq_u32 s{sT}, s{sOFF}")
    A("s_cbranch_scc1 L_spec_ok")
    A("s_waitcnt vmcnt(0)")
    for p in range(DI): issue(p)
    A.label("L_spec_ok")
    A(f"s_or_b32 s{sT}, s{sZ[0]}, s{sZ[1]}")
    A("s_cbranch_scc0 L_go")
    A(f"s_waitcnt vmcnt({W_Q})")
    for b in range(2):
        A(f"s_cmp_eq_u32 s{sZ[b]}, 0")
        A(f"s_cbranch_scc1 L_noz{b}")
        for i in range(4):
            A(f"v_mov_b32 v{Q[b]+i}, 0")
        A.label(f"L_noz{b}")
    A.label("L_go")
    A(f"s_waitcnt vmcnt({min(W_Q, 4)})")
    if opt.stamps:
        A("s_memrealtime s[74:75]")
    A("s_branch L_body")

    def kstep(i):
        K = piece(i)
        for b in range(2):
            A(f"v_mfma_f32_16x16x32_bf16 {vr(D[b],4)}, {K}, {vr(Q[b],4)}, 0")
        for b in range(2):
            A(f"v_mov_b32 v{X[b]+i}, v{NM[b]}")
        for b in range(2):
            A(f"v_cmp_gt_u32 {sr(sMK[b],2)}, s{sN[b]}, v{vTOK+i}")
        A("s_nop 2")
        for j in range(4):
            for b in range(2):
                A(f"v_fmac_f32_dpp v{X[b]+i}, v{D[b]+j}, v{vC} quad_perm:[{j},{j},{j},{j}] row_mask:0xf bank_mask:0xf")
            if j < 3: A("s_nop 0")
        for b in range(2):
            A(f"v_cndmask_b32 v{X[b]+i}, v{vNINF}, v{X[b]+i}, {sr(sMK[b],2)}")

    def softmax(b):
        x = X[b]
        A(f"v_max3_f32 v{t0}, v{x}, v{x+1}, v{x+2}")
        A(f"v_max_f32 v{t0}, v{t0}, v{x+3}")
        A(f"v_cmp_lt_f32 vcc, s{sTHR[b]}, v{t0}")
        A(f"s_cbranch_vccnz L_slow{b}")
        A.label(f"L_back{b}")
        for i in range(4):
            A(f"v_exp_f32 v{x+i}, v{x+i}")
        A(f"v_add_f32 v{t2}, v{x}, v{x+1}")
        A(f"v_add_f32 v{t3}, v{x+2}, v{x+3}")
        for i in range(4):
            A(f"v_cvt_pk_bf16_f32 v{x+i}, v{x+i}, v{x+i}")
        A(f"v_add_f32 v{t2}, v{t2}, v{t3}")
        for i in range(4):
            A(f"v_and_b32 v{B[b]+2*i}, v{x+i}, v{vM0}")
            A(f"v_and_b32 v{B[b]+2*i+1}, v{x+i}, v{vM1}")
        A(f"v_add_f32 v{L[b]}, v{L[b]}, v{t2}")

    def slow(b):
        x = X[b]
        A.label(f"L_slow{b}")
        A(f"v_mov_b32 v{t1}, v{t0}")
        A("s_nop 1")
        A(f"v_permlane32_swap_b32 v{t0}, v{t1}")
        A("s_nop 1")
        A(f"v_max_f32 v{t0}, v{t0}, v{t1}")
        A(f"v_mov_b32 v{t1}, v{t0}")
        A("s_nop 1")
        A(f"v_permlane16_swap_b32 v{t0}, v{t1}")
        A("s_nop 1")
        A(f"v_max3_f32 v{t0}, v{t0}, v{t1}, s{sFLOOR[b]}")
        A(f"v_max_f32 v{t1}, 0, v{t0}")
        A(f"v_exp_f32 v{t1}, -v{t1}")
        A(f"v_sub_f32 v{NM[b]}, v{NM[b]}, v{t0}")
        for i in range(4):
            A(f"v_sub_f32 v{x+i}, v{x+i}, v{t0}")
        for i in range(8):
            A(f"v_mul_f32 v{O[b]+i}, v{t1}, v{O[b]+i}")
        A(f"v_mul_f32 v{L[b]}, v{t1}, v{L[b]}")
        A(f"s_mov_b32 s{sTHR[b]}, {f2u(8.0):#x}")
        A(f"s_mov_b32 s{sFLOOR[b]}, 0")
        A(f"s_branch L_back{b}")

    def pv(b, i):
        V = RING + 16 + 4 * i
        A(f"v_mfma_f32_16x16x16_bf16 {vr(O[b],4)}, {vr(V,2)}, {vr(B[b]+2*i,2)}, {vr(O[b],4)}")
        A(f"v_mfma_f32_16x16x16_bf16 {vr(O[b]+4,4)}, {vr(V+2,2)}, {vr(B[b]+2*i,2)}, {vr(O[b]+4,4)}")

    W = [int(c) - 1 for c in (opt.D if len(opt.D) == 8 else opt.D * 8)]
    WD = [int(c) - 1 for c in (opt.TD if len(opt.TD) == 8 else opt.TD * 8)]
    assert all(w <= DI - 1 for w in W + WD)
    WD[0] = max(W[0], min(WD[0], 7 - opt.astep))
    assert WD[0] <= 7 - opt.astep
    if opt.wplus:
        for x in range(opt.astep + 1, 8): WD[x] += 1
    slow(0); slow(1)
    A.label("L_dyn")
    if opt.stamps in (2, 4):
        if opt.stamps == 2: A("s_mov_b64 s[72:73], s[74:75]")
        A("s_memrealtime s[74:75]")
        A("s_add_u32 s90, s90, 100")
    if opt.gw:
        A(f"v_min_u32 v{t0}, {64 * NR // NG}, v{vTICK}")
        A(f"v_lshl_add_u32 v{t0}, v{t0}, {2 + NG.bit_length() - 1}, s{sG}")
    else:
        A(f"v_min_u32 v{t0}, 128, v{vTICK}")
        A(f"v_lshlrev_b32 v{t0}, 2, v{t0}")
    A(f"ds_read_b32 v{t0}, v{t0} offset:{TAB}")
    A("s_waitcnt lgkmcnt(0)")
    A(f"v_readfirstlane_b32 s{sDESC}, v{t0}")
    unpack()
    A(f"s_cselect_b32 s{sNEED}, 1, 0")
    A("s_branch L_picked")
    A.label("L_first")
    if opt.stamps == 2:
        A("s_memrealtime s[74:75]")
    if opt.stamps == 4:
        A("s_memrealtime s[72:73]")
    A(f"ds_read_b32 v{t0}, v{vZERO} offset:{FLAG}")
    if opt.fb: A(f"v_mov_b32 v{vONE}, 0x10001")
    A(f"s_mov_b32 s{sDEEP}, 1")
    A("s_waitcnt lgkmcnt(0)")
    A(f"v_readfirstlane_b32 s{sNEED}, v{t0}")
    if opt.xm: A(f"v_readfirstlane_b32 s{sMODE}, v{t0}")
    A(f"s_cmp_lg_u32 s{sNEED}, 0")
    A(f"s_cbranch_scc1 L_picked")
    A("s_sleep 2")
    A("s_branch L_first")
    A.label("L_ticket")
    A(f"s_cmp_eq_u32 s{sNEED}, 0")
    A(f"s_cbranch_scc1 {'L_tick_null' if opt.wplus else 'L_tick_done'}")
    A(f"v_mov_b32 v{vTICK}, 1")
    A("s_mov_b64 exec, 1")
    A(f"buffer_atomic_add v{vTICK}, v{vZERO}, {sr(sWS,4)}, s{sCNT} offen sc0 sc1")
    A("s_mov_b64 exec, -1")
    A("s_cmp_eq_u32 s2, s2")
    A("s_branch L_tick_done")
    if opt.wplus:
        assert not opt.probe
        A.label("L_tick_null")
        A(f"buffer_load_dword v{vPRB}, v{vZERO}, {sr(sK,4)}, 0 offen")
        A("s_branch L_tick_done")
    if opt.probe:
        A.label("L_probe")
        A(f"s_cmp_eq_u32 s{sPEND}, 0")
        A("s_cbranch_scc1 L_probe1")
        A(f"v_readfirstlane_b32 s{sT}, v{vPRB}")
        A(f"s_mov_b32 s{sPEND}, 0")
        A(f"s_cmp_ge_u32 s{sT}, {opt.thr}")
        A(f"s_cselect_b32 s{sDEEP}, 1, 0")
        if opt.stamps == 2:
            A(f"s_cselect_b32 s{sT}, 1000, 0")
            A(f"s_add_u32 s90, s90, s{sT}")
        A("s_branch L_picked")
        A.label("L_probe1")
        A(f"ds_read_b32 v{t0}, v{vZERO} offset:{FLAG}")
        A(f"s_lshl_b32 s{sT}, s{sT2}, {5 - opt.probe}")
        A(f"s_and_b32 s{sT}, s{sT}, 0xe0")
        A(f"s_add_u32 s{sT}, s{sT}, s{sCNT}")
        A(f"v_mov_b32 v{vPRB}, 1")
        A("s_waitcnt lgkmcnt(0)")
        A(f"v_readfirstlane_b32 s{sPEND}, v{t0}")
        A(f"s_cmp_eq_u32 s{sPEND}, 0")
        A("s_cbranch_scc1 L_picked")
        A("s_mov_b64 exec, 1")
        A(f"buffer_atomic_add v{vPRB}, v{vZERO}, {sr(sWS,4)}, s{sT} offen offset:4 sc0 sc1")
        A("s_mov_b64 exec, -1")
        A("s_branch L_picked")

    def wait(x):
        if W[x] == WD[x]:
            A(f"s_waitcnt vmcnt({W[x]})")
        else:
            assert WD[x] > W[x]
            A(f"s_waitcnt vmcnt({WD[x]})")
            A(f"s_cbranch_scc1 L_w{x}")
            hb = opt.hm and any(int(m, 2) >> x & 1 for m in opt.hm.split(","))
            if opt.fb: hb = any(m >> x & 1 for m in PAT)
            if hb:
                A(f"s_waitcnt vmcnt({W[x] + 1})")
                A(f"s_bitcmp1_b32 s{sPEND}, {x}")
                A(f"s_cbranch_scc1 L_wb{x}")
                A(f"s_waitcnt vmcnt({W[x]})")
                A.label(f"L_wb{x}")
                A("s_cmp_lg_u32 s2, s2")
            else:
                A(f"s_waitcnt vmcnt({W[x]})")
            A.label(f"L_w{x}")

    A.label("L_body")
    A(f"s_and_b32 s{sN[0]}, s{sNN}, 31")
    A(f"s_lshr_b32 s{sN[1]}, s{sNN}, 5")
    A(f"s_cmp_lg_u32 s{sDEEP}, 0")
    for x in range(8):
        wait(x)
        issue(x + DI)
        if x == 0:
            A(f"s_cmp_eq_u32 s{sMASK}, 0")
            A("s_cbranch_scc1 L_dyn")
            static_pick(); unpack()
            A(f"s_bcnt1_i32_b32 s{sT2}, s{sMASK}")
            A("s_cbranch_scc0 L_first")
            if opt.probe:
                A(f"s_add_u32 s{sT}, s{sT2}, s{sPEND}")
                A(f"s_and_b32 s{sT}, s{sT}, {(1 << opt.probe) - 1}")
                A("s_cbranch_scc0 L_probe")
            A.label("L_picked")
            A(f"s_cmp_lg_u32 s{sDEEP}, 0")
        if x == opt.astep:
            A("s_cbranch_scc1 L_ticket")
            A.label("L_tick_done")
        if opt.fb and x == 5:
            A(f"ds_read_b32 v{vFB}, v{vZERO} offset:{MSK}")
            A("s_mov_b64 exec, 1")
            A(f"ds_add_u32 v{vZERO}, v{vONE} offset:{CNTL}")
            A("s_mov_b64 exec, -1")
        if opt.fb and x == 7:
            A("s_waitcnt lgkmcnt(0)")
            A(f"v_readfirstlane_b32 s{sPEND}, v{vFB}")
        if x < 4:
            kstep(x)
            if x == 3: softmax(0)
        else:
            i = x - 4
            if i == 0:
                pv(0, 0)
                softmax(1)
                A("s_nop 0")
                pv(1, 0)
            else:
                pv(0, i); pv(1, i)
    A(f"s_cmp_lg_u32 s{sNN}, 0")
    A("s_cbranch_scc1 L_body")

    A.label("L_done")
    if opt.stamps: A("s_memrealtime s[76:77]")
    def ow(k):
        b_, i = k >> 2, k & 3
        A(f"ds_write2_b32 v{vEA if b_ == 0 else vEB}, v{O[b_]+i}, v{O[b_]+4+i} offset0:{8*i} offset1:{8*i+4}")
    assert L[0] == NM[0] + 1
    A(f"v_permlane32_swap_b32 v{L[0]}, v{L[1]}")
    A(f"s_cmp_eq_u32 s{sFLOOR[0]}, 0")
    A(f"s_cselect_b32 s{sT}, 0, {f2u(-1e30):#x}")
    A(f"v_add_f32 v{L[0]}, v{L[0]}, v{L[1]}")
    A(f"v_sub_f32 v{NM[0]}, s{sT}, v{NM[0]}")
    A(f"s_cmp_eq_u32 s{sFLOOR[1]}, 0")
    A(f"s_cselect_b32 s{sT2}, 0, {f2u(-1e30):#x}")
    A(f"v_sub_f32 v{NM[1]}, s{sT2}, v{NM[1]}")
    A(f"v_mov_b32 v{t0}, v{L[0]}")
    ow(0); ow(1)
    A(f"v_permlane16_swap_b32 v{L[0]}, v{t0}")
    A(f"v_permlane32_swap_b32 v{NM[0]}, v{NM[1]}")
    ow(2); ow(3)
    A(f"v_add_f32 v{L[0]}, v{L[0]}, v{t0}")
    A(f"ds_write_b64 v{vEM}, {vr(NM[0],2)} offset:{MLB}")
    if opt.fb: A(f"ds_write_b16 v{vZERO}, v{vONE} offset:{CNTL+2}")
    for k in range(4, 8): ow(k)
    A("s_waitcnt lgkmcnt(0)")
    A("s_barrier")
    if opt.stamps in (1, 3, 5): A("s_memrealtime s[78:79]")
    if opt.stamps in (2, 4):
        A("s_add_u32 s78, s70, s90")
        A("s_addc_u32 s79, s71, 0")
    ML = 68
    OO = 48
    S = 64
    A.label("L_epi")
    for w in range(2):
        A(f"ds_read_b128 {vr(ML+4*w,4)}, v{vRM} offset:{MLB+16*w}")
    for w in range(4):
        A(f"ds_read_b128 {vr(OO+4*w,4)}, v{vRO} offset:{4224*w}")
    if opt.mw:
        for w in range(2):
            A(f"ds_read_b128 {vr(24+4*w,4)}, v{vRF} offset:{MLB+16*w}")
    A(f"s_waitcnt lgkmcnt({6 if opt.mw else 4})")
    A(f"v_max3_f32 v14, v{ML}, v{ML+2}, v{ML+4}")
    A(f"v_max_f32 v14, v14, v{ML+6}")
    for w in range(4):
        A(f"v_sub_f32 v{ML+2*w}, v{ML+2*w}, v14")
    for w in range(4):
        A(f"v_exp_f32 v{ML+2*w}, v{ML+2*w}")
    A(f"v_mul_f32 v15, v{ML}, v{ML+1}")
    for w in range(1, 4):
        A(f"v_fmac_f32 v15, v{ML+2*w}, v{ML+2*w+1}")
    A(f"v_max_f32 v15, {f2u(1e-30):#x}, v15")
    A("v_rcp_f32 v12, v15")
    A("v_log_f32 v15, v15")
    A(f"s_waitcnt lgkmcnt({2 if opt.mw else 0})")
    for i in range(2):
        A(f"v_pk_mul_f32 {vr(S+2*i,2)}, {vr(OO+2*i,2)}, {vr(ML,2)} op_sel_hi:[1,0]")
    A("v_add_f32 v14, v14, v15")
    for w in range(1, 4):
        for i in range(2):
            A(f"v_pk_fma_f32 {vr(S+2*i,2)}, {vr(OO+4*w+2*i,2)}, {vr(ML+2*w,2)}, {vr(S+2*i,2)} op_sel_hi:[1,0,1]")
    for i in range(2):
        A(f"v_pk_mul_f32 {vr(S+2*i,2)}, {vr(S+2*i,2)}, v[12:13] op_sel_hi:[1,0]")
    for i in range(4):
        A(f"v_perm_b32 v{S+i}, v{S+i}, v14, s{sPERM+i}")
    for i in range(4):
        A(f"v_min_u32 v{S+i}, -2, v{S+i}")
    if opt.stamps == 5: A("s_memrealtime s[74:75]")
    if opt.xm:
        A(f"s_cmp_eq_u32 s{sMODE}, 2")
        A("s_cbranch_scc0 L_far")
        A(f"buffer_store_dwordx4 {vr(S,4)}, v{vSA}, {sr(sWS,4)}, s{sST} offen {opt.sth}")
        A.label("L_stored")
    else:
        A(f"buffer_store_dwordx4 {vr(S,4)}, v{vSA}, {sr(sWS,4)}, s{sST} offen {opt.sth}")
    if opt.mw:
        R = 32; AC = 36; WV = 40; RF = 24
        DP = lambda n: f"row_ror:{n} row_mask:0xf bank_mask:0xf"
        if opt.mw2:
            A(f"buffer_load_dwordx4 {vr(R,4)}, v{vPA}, {sr(sWS,4)}, s{sPO2} offen {opt.ldh}")
        A(f"s_mov_b32 s{sT2}, 0x80000")
        A("s_mov_b32 s60, 0x0c0c0400")
        A("s_mov_b32 s61, 0x04000c0c")
        A(f"s_mov_b32 s62, {f2u(2.0**30):#x}")
        A("s_mov_b32 s68, 0x00030003")
        A("s_mov_b32 s69, 0x00030003")
        A("s_waitcnt lgkmcnt(0)")
        A(f"v_max3_f32 v{RF}, v24, v26, v28")
        A(f"v_max_f32 v{RF}, v{RF}, v30")
        if opt.mw2: A("s_branch L_mchk")
        if opt.pdelay: A(f"s_sleep {opt.pdelay}")
        A.label("L_mpoll")
        A(f"buffer_load_dwordx4 {vr(R,4)}, v{vPA}, {sr(sWS,4)}, s{sPO2} offen {opt.ldh}")
        A.label("L_mchk")
        A(f"s_sub_u32 s{sT2}, s{sT2}, 1")
        A("s_cbranch_scc1 L_mhave")
        A("s_waitcnt vmcnt(0)")
        A(f"v_max3_u32 v8, v{R}, v{R+1}, v{R+2}")
        A(f"v_max_u32 v8, v8, v{R+3}")
        A("v_cmpx_eq_u32 vcc, -1, v8")
        if opt.psleep:
            A("s_cbranch_execz L_mhave")
            A(f"s_sleep {opt.psleep}")
            A("s_branch L_mpoll")
        else:
            A("s_cbranch_execnz L_mpoll")
        A.label("L_mhave")
        A("s_mov_b64 exec, -1")
        if opt.stamps: A("s_memrealtime s[72:73]")
        A(f"v_perm_b32 v14, v{R+1}, v{R}, s60")
        A(f"v_perm_b32 v15, v{R+3}, v{R+2}, s61")
        A("v_or_b32 v14, v14, v15")
        A.label("L_mred")
        A(f"v_sub_f32 v{WV}, v14, v{RF}")
        A(f"v_exp_f32 v{WV}, v{WV}")
        A("s_nop 0")
        for c in range(2):
            A(f"v_pk_mul_f32 {vr(AC+2*c,2)}, {vr(R+2*c,2)}, {vr(WV,2)} op_sel_hi:[1,0]")
        A(f"v_mov_b32 v9, v{WV}")
        A("s_nop 0")
        A(f"v_permlane32_swap_b32 v{AC}, v{AC+2}")
        A(f"v_permlane32_swap_b32 v{AC+1}, v{AC+3}")
        A(f"v_permlane32_swap_b32 v{WV}, v9")
        A(f"v_add_f32 v{AC}, v{AC}, v{AC+2}")
        A(f"v_add_f32 v{AC+1}, v{AC+1}, v{AC+3}")
        A(f"v_add_f32 v{WV}, v{WV}, v9")
        A(f"v_mov_b32 v9, v{WV}")
        A(f"v_permlane16_swap_b32 v{AC}, v{AC+1}")
        A("s_nop 0")
        A(f"v_permlane16_swap_b32 v{WV}, v9")
        A(f"v_add_f32 v{AC}, v{AC}, v{AC+1}")
        A("s_nop 0")
        A(f"v_add_f32 v{WV}, v{WV}, v9")
        for n in (8, 4, 2):
            A(f"v_add_f32_dpp v{AC}, v{AC}, v{AC} {DP(n)}")
            A("s_nop 0")
            A(f"v_add_f32_dpp v{WV}, v{WV}, v{WV} {DP(n)}")
        A(f"v_rcp_f32 v9, v{WV}")
        A(f"v_cmp_lt_f32 vcc, s62, v{WV}")
        A(f"v_mul_f32 v{AC}, v{AC}, v9")
        A("s_cbranch_vccnz L_mfall")
        A("s_mov_b64 exec, s[68:69]")
        A(f"v_cvt_pk_bf16_f32 v{AC}, v{AC}, v{AC}")
        A(f"buffer_store_short v{AC}, v{vOA2}, {sr(sOUT,4)}, s{sOO2} offen {opt.oh}")
        if opt.stamps:
            A("s_waitcnt vmcnt(0)")
            A("s_memrealtime s[80:81]")
            A("s_branch L_stamps")
        A("s_endpgm")
        if opt.xm:
            A.label("L_far")
            A(f"buffer_store_dwordx4 {vr(S,4)}, v{vSA}, {sr(sWS,4)}, s{sST} offen sc1")
            A("s_branch L_stored")
        A.label("L_mfall")
        A("s_mov_b32 s62, 0x7f800000")
        A(f"v_mov_b32 v{RF}, v14")
        for n in (8, 4, 2):
            A("s_nop 1")
            A(f"v_max_f32_dpp v{RF}, v{RF}, v{RF} {DP(n)}")
        for sw in ("v_permlane16_swap_b32", "v_permlane32_swap_b32"):
            A(f"v_mov_b32 v9, v{RF}")
            A("s_nop 1")
            A(f"{sw} v{RF}, v9")
            A("s_nop 1")
            A(f"v_max_f32 v{RF}, v{RF}, v9")
        A("s_branch L_mred")
    if opt.dry == 2:
        A(f"s_cmp_eq_u32 s{sWAVE}, 4")
        A("s_cbranch_scc1 L_setup")
    def prefetch():
        N = opt.pfn; PF = 24
        A(f"s_cmp_ge_u32 s{sWAVE}, {opt.pfw}")
        A("s_cbranch_scc1 L_pf_done")
        A(f"s_lshl_b32 s{sT}, s{sH}, 5")
        A(f"s_add_u32 s{sT}, s{sT}, s{sS}")
        A(f"s_lshl_b32 s{sT}, s{sT}, {12 + HF}")
        assert not HF or opt.pf == 2
        A(f"v_lshlrev_b32 v{t0}, {7 if opt.pf == 1 else 6 + HF}, v0")
        for k in range(N): A(f"v_mov_b32 v{PF+k}, -1")
        if opt.pf == 1:
            A("s_mov_b32 exec_hi, 0")
            A(f"s_bitset0_b32 exec_lo, s{sS}")
        else:
            A(f"s_lshl_b32 s{sT2}, s{sS}, 1")
            A(f"s_lshl_b64 {sr(sEX,2)}, 3, s{sT2}")
            A(f"s_andn2_b64 exec, exec, {sr(sEX,2)}")
        if opt.pfw > 1:
            per = (32 if opt.pf == 1 else 64) // opt.pfw
            A(f"s_mul_i32 s{sT2}, s{sWAVE}, {per}")
            A(f"s_lshl_b64 {sr(sEX,2)}, {(1 << per) - 1:#x}, s{sT2}")
            A(f"s_and_b64 exec, exec, {sr(sEX,2)}")
        A(f"s_mov_b32 s{sT2}, 0x40000")
        A.label("L_pf")
        for k in range(N):
            A(f"buffer_load_dword v{PF+k}, v{t0}, {sr(sWS,4)}, s{sT} offen sc1")
            A(f"s_waitcnt vmcnt({N-1})")
            A(f"v_cmpx_eq_u32 vcc, -1, v{PF+(k+1)%N}")
            A("s_cbranch_execz L_pf_done")
            if opt.pfs: A(f"s_sleep {opt.pfs}")
        A(f"s_sub_u32 s{sT2}, s{sT2}, 1")
        A("s_cbranch_scc0 L_pf")
        A.label("L_pf_done")
    if opt.stamps == 5:
        A(f"v_readfirstlane_b32 s72, v{vTICK}")
        A("s_mul_i32 s72, s72, 100")
        A("s_add_u32 s72, s72, s70")
        A("s_addc_u32 s73, s71, 0")
    pacing = opt.bar3 == 1
    if opt.pf and not pacing: prefetch()
    A("s_waitcnt vmcnt(0)")
    if opt.stamps: A("s_memrealtime s[80:81]")
    A("s_barrier")
    if opt.pf and pacing:
        prefetch()
        if opt.stamps:
            A("s_waitcnt vmcnt(0)")
            A("s_memrealtime s[80:81]")
    if opt.stamps: A("s_branch L_stamps")
    A("s_endpgm")

    A.label("L_service")
    if opt.stamps:
        A("s_mov_b32 s90, 0")
        A("s_mov_b32 s91, 0")
    A(f"s_load_dwordx2 {sr(sOUT,2)}, s[0:1], 40")
    A(f"s_load_dwordx2 {sr(sDBG,2)}, s[0:1], 48")
    A("v_mov_b32 v2, 0")
    A("v_mov_b32 v3, 0")
    if opt.gw:
        for k in range(2): A(f"ds_write_b64 v2, v[2:3] offset:{TAB+256*NR+8*k}")
        A(f"ds_write_b32 v2, v2 offset:{FLAG}")
    else:
        A(f"ds_write_b64 v2, v[2:3] offset:{TAB+512}")
    if opt.fb:
        A(f"v_mov_b32 v3, {PAT[opt.n0]}")
        A(f"ds_write_b64 v2, v[2:3] offset:{CNTL}")
    A(f"s_mov_b32 s{sOUT+2}, 16384")
    A(f"s_mov_b32 s{sOUT+3}, 0x20000")
    A(f"s_mov_b32 s{sDBG+2}, 256")
    A(f"s_mov_b32 s{sDBG+3}, 0x20000")
    sPO, sPM, sRD, sOO = 40, 41, 42, 46
    A(f"s_lshl_b32 s{sPO}, s{sH}, 5")
    A(f"s_add_u32 s{sPO}, s{sPO}, s{sS}")
    A(f"s_lshl_b32 s{sPO}, s{sPO}, {12 + HF}")
    if HF: A(f"s_add_u32 s{sPM}, s{sPO}, 4096")
    def slot(i, extra=0):
        if HF: return f"s{sPO if i < 2 else sPM} offen offset:{2048*(i&1)+extra}"
        return f"s{sPO} offen offset:{1024*i+extra}"
    A(f"s_lshl_b32 s{sRD}, s{sH}, 5")
    A(f"s_lshr_b32 s{sCNT}, s2, 3")
    A(f"s_lshl_b32 s{sCNT}, s{sCNT}, 8")
    A(f"s_add_u32 s{sCNT}, s{sCNT}, {CNT_OFF:#x}")
    A("v_lshlrev_b32 v1, 4, v0")
    if HF:
        A("v_and_b32 v4, 60, v0")
        A("v_lshl_add_u32 v1, v4, 4, v1")
    for i in range(4): A(f"v_mov_b32 v{4+i}, -1")
    A("s_waitcnt lgkmcnt(0)")
    A("s_barrier")
    A(f"s_load_dwordx2 s[{sCTX[0]}:{sCTX[1]}], {sr(sCP,2)}, 0")
    if opt.lead:
        A(f"s_and_b32 s{sT}, s2, 7")
        A("s_cbranch_scc1 L_nolead")
        A(f"s_mov_b32 s{sT}, s{sPO}")
        for k in range(8):
            for i in range(4):
                A(f"buffer_store_dwordx4 v[4:7], v1, {sr(sWS,4)}, s{sT} offen offset:{1024*i} sc1")
            if k < 7: A(f"s_add_u32 s{sT}, s{sT}, 4096")
        for i in range(2):
            A(f"buffer_store_dwordx4 v[4:7], v1, {sr(sWS,4)}, s{sPM} offen offset:{1024*i} sc1")
        A("s_mov_b64 exec, 1")
        A(f"buffer_store_dword v2, v2, {sr(sWS,4)}, s{sCNT} offen sc1")
        A("v_mov_b32 v3, 1")
        A("s_waitcnt vmcnt(0)")
        A(f"buffer_atomic_add v3, v2, {sr(sDBG,4)}, 0 offen sc1")
        A("s_mov_b64 exec, -1")
        A.label("L_nolead")
        A(f"s_mov_b32 s{sRD}, 0")
    else:
        if not opt.noclear:
            for i in range(4):
                A(f"buffer_store_dwordx4 v[4:7], v1, {sr(sWS,4)}, {slot(i)} {opt.clh}")
        A(f"s_and_b32 s{sT}, s2, 7")
        A("s_cbranch_scc1 L_nolead")
        A("v_lshlrev_b32 v20, 2, v0")
        A(f"buffer_store_dword v2, v20, {sr(sWS,4)}, s{sCNT} offen sc1")
        A.label("L_nolead")
    A("s_waitcnt lgkmcnt(0)")
    ctx_setup(False)
    A(f"s_add_u32 s{sT}, s{sCTX[0]}, 15")
    A(f"s_sub_i32 s{sT}, s{sT}, s{sP0[0]}")
    A(f"s_ashr_i32 s{sT}, s{sT}, 4")
    A(f"s_max_i32 s{sT}, s{sT}, 0")
    A(f"s_lshr_b32 s{sP0[0]}, s{sP0[0]}, 4")
    A(f"s_lshr_b32 s{sP0[1]}, s{sP0[1]}, 4")
    A(f"s_sub_i32 s{sP0[1]}, s{sP0[1]}, s{sT}")
    A(f"v_mov_b32 v8, s{sP0[0]}")
    A(f"v_mov_b32 v9, s{sP0[1]}")
    A(f"v_mov_b32 v10, s{sCTX[0]}")
    A(f"v_mov_b32 v11, s{sCTX[1]}")
    if opt.gw:
        for r in range(NR): A(f"v_add_u32 v{32+r}, {64*r}, v0")
    else:
        A(f"v_lshl_add_u32 v32, v0, 2, s{sG}")
        A("v_add_u32 v33, 256, v32")
    for r in range(NR):
        u = 32 + r; p = 40 + r; n = 48 + r; a = 56 + r
        A(f"v_cmp_le_u32 vcc, s{sT}, v{u}")
        A("s_nop 1")
        A(f"v_cndmask_b32 v{p}, v8, v9, vcc")
        A(f"v_cndmask_b32 v{n}, v10, v11, vcc")
        A(f"v_cndmask_b32 v{a}, 0, 1, vcc")
        A(f"v_add_u32 v{p}, v{p}, v{u}")
        A(f"v_lshlrev_b32 v{u}, 4, v{p}")
        A(f"v_sub_u32 v{n}, v{n}, v{u}")
        A(f"v_med3_i32 v{n}, v{n}, 0, 16")
        A(f"v_mul_u32_u24 v{u}, 5, v{a}")
        A(f"v_lshlrev_b32 v{n}, v{u}, v{n}")
        A(f"v_lshlrev_b32 v{p}, 2, v{p}")
        A(f"v_lshl_add_u32 v{p}, v{a}, 13, v{p}")
        A(f"buffer_load_dword v{a}, v{p}, {sr(sBT,4)}, 0 offen")
    A("v_lshlrev_b32 v20, 2, v0")
    A("v_mov_b32 v3, 1")
    sXC = 47
    if opt.xm:
        A(f"s_getreg_b32 s{sXC}, hwreg(HW_REG_XCC_ID, 0, 3)")
        A(f"s_lshl_b32 s{sXC}, s{sXC}, 3")
        A(f"s_lshl_b64 {sr(sEX,2)}, 1, s{sXC}")
        A(f"v_mov_b32 v12, s{sEX}")
        A(f"v_mov_b32 v13, s{sEX+1}")
        A("v_lshlrev_b32 v14, 5, v0")
    A("s_waitcnt vmcnt(0)")
    A("s_mov_b64 exec, 1")
    if opt.xm:
        A(f"buffer_atomic_add_x2 v[12:13], v2, {sr(sDBG,4)}, s{sRD} offen sc1")
    elif not opt.nordy and not opt.lead: A(f"buffer_atomic_add v3, v2, {sr(sDBG,4)}, s{sRD} offen sc1")
    A("s_mov_b64 exec, -1")
    for r in range(NR):
        n = 48 + r; a = 56 + r
        A(f"v_min_u32 v{a}, 3071, v{a}")
        A(f"v_cmp_ne_u32 vcc, 0, v{n}")
        A(f"v_lshl_or_b32 v{a}, v{a}, 15, v{n}")
        A("s_nop 0")
        A(f"v_cndmask_b32 v{a}, 0, v{a}, vcc")
        A(f"ds_write_b32 v20, v{a} offset:{TAB+256*r}")
    A(f"s_lshr_b32 s{sOO}, s{sS}, 4")
    A(f"s_lshl_b32 s{sOO}, s{sOO}, 13")
    A(f"s_lshl_b32 s{sT}, s{sH}, 10")
    A(f"s_add_u32 s{sOO}, s{sOO}, s{sT}")
    A(f"s_and_b32 s{sT}, s{sS}, 15")
    A(f"s_lshl_b32 s{sT}, s{sT}, 6")
    A(f"s_add_u32 s{sOO}, s{sOO}, s{sT}")
    A(f"s_mov_b32 s{sT2}, 0x10000")
    if opt.xm:
        A("s_mov_b64 exec, 0xff")
        n = opt.l2rd
        while n > 0:
            A(f"s_sleep {min(n, 127)}"); n -= 127
        A(f"buffer_load_dwordx2 v[8:9], v14, {sr(sDBG,4)}, 0 offen")
        A("s_branch L_rdy_chk")
        A.label("L_rdy")
        A(f"s_sleep {opt.rsl}")
        A(f"buffer_load_dwordx2 v[8:9], v14, {sr(sDBG,4)}, 0 offen sc1")
        A.label("L_rdy_chk")
        A("s_waitcnt vmcnt(0)")
        A("v_add_u32 v10, v8, v9")
        A("v_sad_u8 v10, v10, 0, 0")
        A("v_cmp_gt_u32 vcc, 32, v10")
        A("s_cbranch_vccz L_rdy_ok")
        A(f"s_sub_u32 s{sT2}, s{sT2}, 1")
        A("s_cbranch_scc0 L_rdy")
        A.label("L_rdy_ok")
        A(f"v_readlane_b32 s{sEX}, v8, s{sH}")
        A(f"v_readlane_b32 s{sEX+1}, v9, s{sH}")
        A(f"s_lshr_b64 {sr(sEX,2)}, {sr(sEX,2)}, s{sXC}")
        A(f"s_and_b32 s{sEX}, s{sEX}, 0xff")
        A(f"s_cmp_eq_u32 s{sEX}, 32")
        A(f"s_cselect_b32 s{sT}, 2, 1")
        A(f"v_mov_b32 v3, s{sT}")
        A("s_waitcnt lgkmcnt(0)")
        A(f"ds_write_b32 v2, v3 offset:{FLAG}")
    else:
        A("s_mov_b64 exec, 1")
        if opt.nordy: A("s_branch L_rdy_ok")
        if opt.l2rd:
            n = opt.l2rd
            while n > 0:
                A(f"s_sleep {min(n, 127)}"); n -= 127
            A(f"buffer_load_dword v8, v2, {sr(sDBG,4)}, s{sRD} offen")
            A("s_branch L_rdy_chk")
        A.label("L_rdy")
        for i in range(opt.rsleep): A("s_sleep 127")
        A(f"buffer_load_dword v8, v2, {sr(sDBG,4)}, s{sRD} offen sc1")
        A.label("L_rdy_chk")
        A("s_waitcnt vmcnt(0)")
        A(f"v_readfirstlane_b32 s{sT}, v8")
        A(f"s_cmp_ge_u32 s{sT}, 32")
        A("s_cbranch_scc1 L_rdy_ok")
        A(f"s_sub_u32 s{sT2}, s{sT2}, 1")
        A("s_cbranch_scc0 L_rdy")
        A.label("L_rdy_ok")
        A("s_waitcnt lgkmcnt(0)")
        A(f"ds_write_b32 v2, v3 offset:{FLAG}")
    A("s_mov_b64 exec, -1")
    if opt.stamps and not opt.xs: A("s_memrealtime s[72:73]")
    if opt.stamps and opt.xs:
        A("s_getreg_b32 s72, hwreg(HW_REG_XCC_ID, 0, 4)")
        A("s_mul_i32 s72, s72, 100")
        A("s_add_u32 s72, s72, s70")
        A("s_addc_u32 s73, s71, 0")
    if opt.mw:
        if opt.pt:
            for k in range(opt.ptd): A("s_sleep 127")
            for i in range(4):
                A(f"buffer_load_dwordx4 {vr(48+4*i,4)}, v1, {sr(sWS,4)}, {slot(i)} {opt.pth}")
            A("s_waitcnt vmcnt(0)")
        if opt.fb:
            sL, sD, sE, sLUT = 48, 49, 50, 52
            lut = sum(m << (8 * i) for i, m in enumerate(PAT))
            A("s_mov_b64 exec, 3")
            A(f"s_lshl_b32 s{sT}, s{sH}, 8")
            A(f"s_add_u32 s{sT}, s{sT}, 64")
            A(f"v_mul_u32_u24 v14, s{sT}, v0")
            A(f"s_and_b32 s{sCNT}, s{sCNT}, 0xfffff800")
            A(f"s_mov_b32 s{sL}, 0")
            A(f"s_mov_b32 s{sLUT}, {lut & 0xffffffff:#x}")
            A(f"s_mov_b32 s{sLUT+1}, {lut >> 32:#x}")
            A(f"s_and_b32 s{sT}, s{sS}, 7")
            A.label("L_ph")
            A(f"s_sleep {opt.phs}")
            A(f"s_sub_u32 s{sT}, s{sT}, 1")
            A("s_cbranch_scc0 L_ph")
            A.label("L_fb")
            A(f"ds_read_b32 v8, v2 offset:{CNTL}")
            A("s_waitcnt lgkmcnt(0)")
            A(f"v_readfirstlane_b32 s{sT}, v8")
            A(f"s_lshr_b32 s{sT2}, s{sT}, 16")
            A("s_cbranch_scc1 L_fb_done")
            A(f"s_sub_u32 s{sD}, s{sT}, s{sL}")
            A(f"s_mov_b32 s{sL}, s{sT}")
            A(f"v_mov_b32 v8, s{sD}")
            A(f"buffer_atomic_add v8, v14, {sr(sWS,4)}, s{sCNT} offen offset:64 sc0 sc1")
            A(f"s_lshl_b32 s{sD}, s{sD}, 2")
            A(f"s_sub_i32 s{sD}, {opt.bias + (opt.n0 << opt.ksh)}, s{sD}")
            A("s_waitcnt vmcnt(0)")
            A(f"v_readlane_b32 s{sE}, v8, 0")
            A(f"v_readlane_b32 s{sT}, v8, 1")
            A(f"s_add_i32 s{sE}, s{sE}, s{sD}")
            A(f"s_lshl_b32 s{sT}, s{sT}, 3")
            A(f"s_sub_i32 s{sE}, s{sE}, s{sT}")
            A(f"s_ashr_i32 s{sE}, s{sE}, {opt.ksh}")
            A(f"s_max_i32 s{sE}, s{sE}, 0")
            A(f"s_min_i32 s{sE}, s{sE}, 7")
            if opt.stamps:
                A(f"s_add_u32 s90, s90, s{sE}")
                A("s_add_u32 s91, s91, 1")
            A(f"s_lshl_b32 s{sE}, s{sE}, 3")
            A(f"s_lshr_b64 {sr(sEX,2)}, {sr(sLUT,2)}, s{sE}")
            A(f"v_mov_b32 v8, s{sEX}")
            A(f"ds_write_b32 v2, v8 offset:{MSK}")
            if opt.fbs: A(f"s_sleep {opt.fbs}")
            A("s_branch L_fb")
            A.label("L_fb_done")
            A("s_mov_b64 exec, -1")
        A("s_waitcnt lgkmcnt(0)")
        A("s_barrier")
        if opt.stamps:
            for r in (76, 80): A(f"s_memrealtime s[{r}:{r+1}]")
            for r, c in ((74, 90), (78, 91)):
                A(f"s_mul_i32 s{r}, s{c}, 100")
                A(f"s_add_u32 s{r}, s{r}, s70")
                A(f"s_addc_u32 s{r+1}, s71, 0")
            A("s_branch L_stamps")
        A("s_endpgm")
    sMISS = [48, 50, 52, 54]
    sWT, sB3, sSZ, sOM = 62, 63, 47, 68
    AC, WS_, REF, vOA = 24, 28, 30, 22
    sDRY = 30
    def bar(tag):
        if opt.dry:
            A(f"s_cmp_lg_u32 s{sDRY}, 0")
            A(f"s_cbranch_scc1 L_nb{tag}")
        A("s_barrier")
        if opt.dry: A.label(f"L_nb{tag}")
    if opt.dry:
        A(f"s_mov_b32 s{sDRY}, 1")
        A(f"s_mov_b32 s{sWS+2}, 0")
        A(f"s_mov_b32 s{sOUT+2}, 0")
        A(f"s_mov_b32 s{sWT}, 0x7f800000")
        if opt.dry == 2:
            for r in (vRM, vRO, vSA): A(f"v_mov_b32 v{r}, 0")
            A(f"s_mov_b32 s{sST}, 0")
            A("s_branch L_epi")
        A.label("L_setup")
    else:
        A(f"s_mov_b32 s{sWT}, {f2u(2.0**30):#x}")
    A(f"s_mov_b32 s{sT2}, 0x40000")
    A("s_mov_b32 s60, 0x0c0c0400")
    A("s_mov_b32 s61, 0x04000c0c")
    A(f"s_mov_b32 s{sB3}, 0")
    A(f"s_mov_b32 s{sSZ}, {WS_SIZE:#x}")
    A(f"s_mov_b32 s{sOM}, 0x00ff00ff")
    A(f"s_mov_b32 s{sOM+1}, 0x00ff00ff")
    A(f"s_and_b32 s{sT}, s{sS}, 7")
    A(f"s_lshl_b32 s{sT}, s{sT}, 3")
    A(f"s_lshl_b64 {sr(sEX,2)}, 0xff, s{sT}")
    A(f"s_not_b64 {sr(sEX,2)}, {sr(sEX,2)}")
    A(f"s_lshr_b32 s{sT}, s{sS}, 3")
    for i in range(4):
        A(f"s_cmp_eq_u32 s{sT}, {i}")
        A(f"s_cselect_b64 {sr(sMISS[i],2)}, {sr(sEX,2)}, -1")
    A("v_and_b32 v8, 7, v0")
    A("v_lshrrev_b32 v9, 4, v0")
    A("v_lshlrev_b32 v9, 1, v9")
    A(f"v_lshl_add_u32 v{vOA}, v8, 3, v9")
    A("v_bfe_u32 v9, v0, 3, 2")
    A(f"s_lshr_b32 s{sT}, s{sS}, 2")
    A(f"s_lshl_b32 s56, s{sT}, 5")
    A("v_mov_b32 v10, s56")
    A("v_lshl_add_u32 v11, v9, 3, v10")
    A(f"s_mul_i32 s56, s{sT}, 528")
    A(f"s_and_b32 s{sT}, s{sS}, 3")
    A(f"s_lshl_b32 s{sT}, s{sT}, 7")
    A(f"s_add_u32 s56, s56, s{sT}")
    A("v_mul_u32_u24 v12, 4224, v9")
    A("v_lshl_add_u32 v12, v8, 4, v12")
    A("v_add_u32 v12, s56, v12")
    for i in range(5): A(f"v_mov_b32 v{AC+i}, 0")
    for i in range(16 * opt.ka): A(f"v_mov_b32 v{48 + 16 * opt.kp + i}, -1")
    A("s_waitcnt lgkmcnt(0)")
    bar("2")
    if opt.stamps: A("s_memrealtime s[74:75]")
    KP = opt.kp
    KA = opt.ka
    SETS = [48 + 16 * j for j in range(KP + KA)]
    assert SETS[-1] + 16 <= NV
    def pissue(j, first=False):
        for i in range(4):
            if first:
                A(f"s_mov_b64 exec, {sr(sMISS[i],2)}")
            elif opt.null:
                A(f"s_cmp_lg_u64 {sr(sMISS[i],2)}, 0")
                A(f"s_cselect_b32 s{sWS+2}, s{sSZ}, 0")
                A(f"s_cselect_b64 exec, {sr(sMISS[i],2)}, 1")
            else:
                A(f"s_or_b64 exec, {sr(sMISS[i],2)}, 1")
            A(f"buffer_load_dwordx4 {vr(SETS[j]+4*i,4)}, v1, {sr(sWS,4)}, {slot(i)} {opt.ldh}")
    def aissue(j):
        for i in range(4):
            A(f"s_cmp_lg_u64 {sr(sMISS[i],2)}, 0")
            A(f"s_cselect_b32 s{sWS+2}, s{sSZ}, 0")
            A(f"s_cselect_b64 exec, {sr(sMISS[i],2)}, 1")
            for k in range(2):
                A(f"buffer_atomic_and_x2 {vr(SETS[KP+j]+4*i+2*k,2)}, v1, {sr(sWS,4)}, {slot(i, 8*k)} sc0 sc1")
    def lse(dst, R):
        A(f"v_perm_b32 v{dst}, v{R+1}, v{R}, s60")
        A(f"v_perm_b32 v{dst+1}, v{R+3}, v{R+2}, s61")
    def process(j, i, tag):
        R = SETS[j] + 4 * i
        A(f"s_mov_b64 exec, {sr(sMISS[i],2)}")
        if tag: A(f"s_cbranch_execz L_pc{tag}")
        A(f"v_max3_u32 v8, v{R}, v{R+1}, v{R+2}")
        lse(14, R)
        A(f"v_max_u32 v8, v8, v{R+3}")
        A("v_or_b32 v14, v14, v15")
        A("v_cmpx_ne_u32 vcc, -1, v8")
        A(f"v_sub_f32 v14, v14, v{REF}")
        A("v_exp_f32 v14, v14")
        A(f"s_andn2_b64 {sr(sMISS[i],2)}, {sr(sMISS[i],2)}, vcc")
        for c in range(2):
            A(f"v_pk_fma_f32 {vr(AC+2*c,2)}, {vr(R+2*c,2)}, v[14:15], {vr(AC+2*c,2)} op_sel_hi:[1,0,1]")
        A(f"v_add_f32 v{WS_}, v{WS_}, v14")
        if tag: A.label(f"L_pc{tag}")
    def anymiss(thr=False, tgt="L_atom"):
        if thr and KA:
            for i in range(4): A(f"s_bcnt1_i32_b64 s{56+i}, {sr(sMISS[i],2)}")
            A("s_add_u32 s56, s56, s57")
            A("s_add_u32 s58, s58, s59")
            A("s_add_u32 s56, s56, s58")
            A("s_cmp_eq_u32 s56, 0")
            A("s_cbranch_scc1 L_have")
            A(f"s_cmp_le_u32 s56, {opt.athr * 8}")
            A(f"s_cbranch_scc1 {tgt}")
            return
        A(f"s_or_b64 {sr(sEX,2)}, {sr(sMISS[0],2)}, {sr(sMISS[1],2)}")
        A(f"s_or_b64 {sr(56,2)}, {sr(sMISS[2],2)}, {sr(sMISS[3],2)}")
        A(f"s_or_b64 {sr(sEX,2)}, {sr(sEX,2)}, {sr(56,2)}")
        A("s_cbranch_scc0 L_have")
    def own():
        A("s_mov_b64 exec, -1")
        A(f"ds_read_b128 v[32:35], v10 offset:{MLB}")
        A(f"ds_read_b128 v[36:39], v10 offset:{MLB+16}")
        A(f"ds_read_b64 v[40:41], v11 offset:{MLB}")
        A("ds_read_b128 v[44:47], v12")
        A("s_waitcnt lgkmcnt(2)")
        A(f"v_max3_f32 v{REF}, v32, v34, v36")
        A(f"v_max_f32 v{REF}, v{REF}, v38")
        A("s_mov_b32 exec_hi, 0")
        A("s_waitcnt lgkmcnt(0)")
        A(f"v_sub_f32 v40, v40, v{REF}")
        A("v_exp_f32 v40, v40")
        A("s_nop 0")
        for c in range(2):
            A(f"v_pk_mul_f32 {vr(AC+2*c,2)}, {vr(44+2*c,2)}, v[40:41] op_sel_hi:[1,0]")
        A(f"v_mul_f32 v{WS_}, v40, v41")
    if opt.early:
        if opt.pdelay: A(f"s_sleep {opt.pdelay}")
        pissue(0, True)
        own()
    else:
        own()
        bar("3")
        A(f"s_mov_b32 s{sB3}, 1")
        pissue(0, True)
    for i in range(4):
        A(f"s_waitcnt vmcnt({3-i})")
        process(0, i, None)
    if opt.early and opt.bar3 == 1:
        anymiss()
        A("s_barrier")
        A(f"s_mov_b32 s{sB3}, 1")
        if KA: anymiss(True)
    else:
        anymiss(True)
    for j in range(KP - 1):
        pissue(j)
        if opt.stag: A(f"s_sleep {opt.stag}")
    A.label("L_poll")
    for j in range(KP):
        pissue((j + KP - 1) % KP)
        A(f"s_waitcnt vmcnt({4 * (KP - 1)})")
        for i in range(4):
            process(j, i, f"{j}_{i}")
        anymiss(True, f"L_tr{j}" if KP == 2 and KA == 2 else "L_atom")
        if opt.psleep: A(f"s_sleep {opt.psleep}")
    A(f"s_sub_u32 s{sT2}, s{sT2}, 1")
    A("s_cbranch_scc0 L_poll")
    if KA:
        A("s_branch L_have")
        if KP == 2 and KA == 2:
            for j in range(2):
                A.label(f"L_tr{j}")
                aissue(0)
                A("s_waitcnt vmcnt(8)")
                for i in range(4):
                    process(1 - j, i, f"t{j}_{i}")
                anymiss()
                if opt.astag > 2: A(f"s_sleep {opt.astag - 2}")
                A("s_branch L_apoll")
        A.label("L_atom")
        for j in range(KA - 1):
            aissue(j)
            if opt.astag: A(f"s_sleep {opt.astag}")
        A.label("L_apoll")
        for j in range(KA):
            aissue((j + KA - 1) % KA)
            A(f"s_waitcnt vmcnt({8 * (KA - 1)})")
            for i in range(4):
                process(KP + j, i, f"a{j}_{i}")
            anymiss()
        A(f"s_sub_u32 s{sT2}, s{sT2}, 1")
        A("s_cbranch_scc0 L_apoll")
    DPP8 = "row_ror:8 row_mask:0xf bank_mask:0xf"
    A.label("L_have")
    if opt.stamps:
        A("s_memrealtime s[76:77]")
        A(f"s_sub_u32 s78, 0x40000, s{sT2}")
    A("s_mov_b64 exec, -1")
    A(f"v_mov_b32 v9, v{WS_}")
    A(f"v_permlane32_swap_b32 v{AC}, v{AC+2}")
    A(f"v_permlane32_swap_b32 v{AC+1}, v{AC+3}")
    A(f"v_permlane32_swap_b32 v{WS_}, v9")
    A(f"v_add_f32 v{AC}, v{AC}, v{AC+2}")
    A(f"v_add_f32 v{AC+1}, v{AC+1}, v{AC+3}")
    A(f"v_add_f32 v{WS_}, v{WS_}, v9")
    A(f"v_mov_b32 v9, v{WS_}")
    A(f"v_permlane16_swap_b32 v{AC}, v{AC+1}")
    A("s_nop 0")
    A(f"v_permlane16_swap_b32 v{WS_}, v9")
    A(f"v_add_f32 v{AC}, v{AC}, v{AC+1}")
    A("s_nop 0")
    A(f"v_add_f32 v{WS_}, v{WS_}, v9")
    A(f"v_add_f32_dpp v{AC}, v{AC}, v{AC} {DPP8}")
    A("s_nop 0")
    A(f"v_add_f32_dpp v{WS_}, v{WS_}, v{WS_} {DPP8}")
    A(f"v_rcp_f32 v9, v{WS_}")
    A(f"v_cmp_lt_f32 vcc, s{sWT}, v{WS_}")
    A(f"v_mul_f32 v{AC}, v{AC}, v9")
    A("s_cbranch_vccnz L_fall")
    A(f"s_mov_b64 exec, {sr(sOM,2)}")
    A(f"v_cvt_pk_bf16_f32 v{AC}, v{AC}, v{AC}")
    A(f"buffer_store_short v{AC}, v{vOA}, {sr(sOUT,4)}, s{sOO} offen")
    if opt.dry:
        A(f"s_cmp_lg_u32 s{sDRY}, 0")
        A("s_cbranch_scc1 L_real")
    if opt.stamps:
        A("s_waitcnt vmcnt(0)")
        A("s_memrealtime s[80:81]")
    A(f"s_cmp_lg_u32 s{sB3}, 0")
    A("s_cbranch_scc1 L_fin")
    A("s_barrier")
    A.label("L_fin")
    if opt.diag:
        A.label("L_diag")
        A("s_memrealtime s[72:73]")
        A("s_waitcnt lgkmcnt(0)")
        A("s_sub_u32 s72, s72, s70")
        A(f"s_cmp_lt_u32 s72, {opt.diag}")
        A("s_cbranch_scc1 L_diag")
    if opt.stamps:
        A("s_mul_i32 s78, s78, 100")
        A("s_waitcnt lgkmcnt(0)")
        A("s_add_u32 s78, s78, s70")
        A("s_addc_u32 s79, s71, 0")
        A.label("L_stamps")
        A("s_mov_b64 exec, -1")
        A("s_waitcnt lgkmcnt(0)")
        A(f"s_add_u32 s84, s{sWS}, 0x4000000")
        A(f"s_addc_u32 s85, s{sWS+1}, 0")
        A("s_and_b32 s85, s85, 0xffff")
        A("s_mov_b32 s86, 0x100000")
        A("s_mov_b32 s87, 0x20000")
        A("s_mul_i32 s88, s2, 5")
        A(f"s_add_u32 s88, s88, s{sWAVE}")
        A("s_mul_i32 s88, s88, 48")
        for j in range(6):
            A(f"v_mov_b32 v0, s{70+2*j}")
            A(f"v_mov_b32 v1, s{71+2*j}")
            A("v_mov_b32 v2, 0")
            A("s_mov_b64 exec, 1")
            A(f"buffer_store_dwordx2 v[0:1], v2, s[84:87], s88 offen offset:{8*j}")
            A("s_waitcnt vmcnt(0)")
    A.label("L_end")
    A("s_endpgm")
    A.label("L_fall")
    A("s_mov_b64 exec, -1")
    A(f"s_mov_b32 s{sWS+2}, s{sSZ}")
    A(f"s_mov_b32 s{sWT}, 0x7f800000")
    A(f"s_cmp_lg_u32 s{sB3}, 0")
    A("s_cbranch_scc1 L_fall1")
    A("s_barrier")
    A(f"s_mov_b32 s{sB3}, 1")
    A.label("L_fall1")
    A("s_waitcnt vmcnt(0)")
    R0 = SETS[0]
    for i in range(4):
        A(f"buffer_load_dwordx4 {vr(R0+4*i,4)}, v1, {sr(sWS,4)}, {slot(i)} {opt.ldh}")
    A("s_waitcnt vmcnt(0)")
    for i in range(4): lse(32 + 2*i, R0 + 4*i)
    for i in range(4): A(f"v_or_b32 v{32+2*i}, v{32+2*i}, v{33+2*i}")
    A("v_max3_f32 v8, v32, v34, v36")
    A("v_max_f32 v8, v8, v38")
    A("s_nop 1")
    A(f"v_max_f32_dpp v8, v8, v8 {DPP8}")
    for sw in ("v_permlane16_swap_b32", "v_permlane32_swap_b32"):
        A("v_mov_b32 v9, v8")
        A("s_nop 1")
        A(f"{sw} v8, v9")
        A("s_nop 1")
        A("v_max_f32 v8, v8, v9")
    for i in range(4): A(f"v_sub_f32 v{32+2*i}, v{32+2*i}, v8")
    for i in range(4): A(f"v_exp_f32 v{32+2*i}, v{32+2*i}")
    A("s_nop 0")
    for c in range(4): A(f"v_mul_f32 v{AC+c}, v32, v{R0+c}")
    A(f"v_add_f32 v{WS_}, v32, v34")
    for i in range(1, 4):
        for c in range(4): A(f"v_fmac_f32 v{AC+c}, v{32+2*i}, v{R0+4*i+c}")
        if i > 1: A(f"v_add_f32 v{WS_}, v{WS_}, v{32+2*i}")
    A("s_branch L_have")
    if opt.dry:
        A.label("L_real")
        A("s_waitcnt vmcnt(0)")
        A("s_mov_b64 exec, -1")
        A(f"s_mov_b32 s{sDRY}, 0")
        A(f"s_mov_b32 s{sWS+2}, {WS_SIZE:#x}")
        A(f"s_mov_b32 s{sOUT+2}, 16384")
        A(f"s_mov_b32 s{sWT}, {f2u(2.0**30):#x}")
        A("s_branch L_setup")

    acc = (NV + 3) // 4 * 4
    A.raw('.section .rodata,"a"')
    A.raw(".p2align 6")
    A.raw(f""".amdhsa_kernel {NAME}_kernel
  .amdhsa_next_free_vgpr {NV}
  .amdhsa_next_free_sgpr {100 if opt.stamps or opt.diag else 78}
  .amdhsa_accum_offset {acc}
  .amdhsa_group_segment_fixed_size 0
  .amdhsa_kernarg_size 64
  .amdhsa_user_sgpr_count 2
  .amdhsa_user_sgpr_kernarg_segment_ptr 1
  .amdhsa_system_sgpr_workgroup_id_x 1
.end_amdhsa_kernel""")
    return A.text()

if __name__ == "__main__":
    p = argparse.ArgumentParser()
    p.add_argument("--D", default="5")
    p.add_argument("--TD", default="7")
    p.add_argument("--dyn", type=int, default=1)
    p.add_argument("--rt", type=int, default=128)
    p.add_argument("--psleep", type=int, default=0)
    p.add_argument("--noclear", type=int, default=0)
    p.add_argument("--nordy", type=int, default=0)
    p.add_argument("--rsleep", type=int, default=1)
    p.add_argument("--csleep", type=int, default=0)
    p.add_argument("--hrot", type=int, default=0)
    p.add_argument("--lead", type=int, default=0)
    p.add_argument("--l2rd", type=int, default=0)
    p.add_argument("--sth", default="sc1")
    p.add_argument("--ldh", default="sc1")
    p.add_argument("--clh", default="sc1")
    p.add_argument("--astep", type=int, default=2)
    p.add_argument("--probe", type=int, default=0, help="log2 of the probe period in items")
    p.add_argument("--thr", type=int, default=20)
    p.add_argument("--aprobe", type=int, default=0)
    p.add_argument("--hm", default="", help="4 binary masks (head & 3): steps one deeper")
    p.add_argument("--wmap", type=int, default=0)
    p.add_argument("--atx", type=int, default=0)
    p.add_argument("--atop", default="add_f64")
    p.add_argument("--atsc", default="sc1")
    p.add_argument("--oh", default="")
    p.add_argument("--kp", type=int, default=2)
    p.add_argument("--stag", type=int, default=0)
    p.add_argument("--bar3", type=int, default=0)
    p.add_argument("--pdelay", type=int, default=0)
    p.add_argument("--wplus", type=int, default=0)
    p.add_argument("--hint", default="nt")
    p.add_argument("--lds", type=int, default=0)
    p.add_argument("--stamps", type=int, default=0)
    p.add_argument("--diag", type=int, default=0)
    p.add_argument("--pg", type=int, default=0)
    p.add_argument("--ord", type=int, default=0)
    p.add_argument("--early", type=int, default=1)
    p.add_argument("--null", type=int, default=1)
    p.add_argument("--otouch", type=int, default=0)
    p.add_argument("--dry", type=int, default=0)
    p.add_argument("--ka", type=int, default=0)
    p.add_argument("--gw", type=int, default=0)
    p.add_argument("--ng", type=int, default=4)
    p.add_argument("--half", type=int, default=0)
    p.add_argument("--pf", type=int, default=0)
    p.add_argument("--pfn", type=int, default=10)
    p.add_argument("--pfs", type=int, default=1)
    p.add_argument("--pfw", type=int, default=1)
    p.add_argument("--hx", type=int, default=0)
    p.add_argument("--xs", type=int, default=0)
    p.add_argument("--mw", type=int, default=0)
    p.add_argument("--mw2", type=int, default=0)
    p.add_argument("--pt", type=int, default=0)
    p.add_argument("--ptd", type=int, default=0)
    p.add_argument("--pth", default="sc1")
    p.add_argument("--fb", type=int, default=0)
    p.add_argument("--xm", type=int, default=0)
    p.add_argument("--rsl", type=int, default=127)
    p.add_argument("--n0", type=int, default=2)
    p.add_argument("--ksh", type=int, default=3)
    p.add_argument("--bias", type=int, default=0)
    p.add_argument("--phs", type=int, default=5)
    p.add_argument("--fbs", type=int, default=4)
    p.add_argument("--pat", default="0,10000000,10001000,10100100,10101010,11101110,11111110,11111111")
    p.add_argument("--athr", type=int, default=8)
    p.add_argument("--astag", type=int, default=3)
    p.add_argument("-o", default="/dev/stdout")
    o = p.parse_args()
    if o.hint: o.hint = " " + o.hint
    open(o.o, "w").write(gen(o))
```

```python
import sys, re
s = open(sys.argv[1]).read()
def rep(a, b, n=1):
    global s
    assert s.count(a) >= 1, a
    s = s.replace(a, b, n)
def cut(a, b):
    global s
    i = s.index(a) + len(a); j = s.index(b, i)
    s = s[:i] + s[j:]
rep(".amdgcn_target", """;
.amdgcn_target""")
k = "    s_load_dwordx2 s[20:21], s[0:1], 24\n"
rep(k, k + "    s_getpc_b64 s[52:53]\nL_pc:\n    v_lshlrev_b32 v18, 6, v0\n    v_min_u32 v18, L_end-L_pc, v18\n"
      "    global_load_dword v114, v18, s[52:53]             ; pulls this code into L2 ahead of the K/V stream\n")
rep("    s_and_b32 s43, s2, 7\n    s_bfe_u32 s44, s2, 0x30003\n", "; kv head = wg & 7 (round-robin dispatch keeps a head on one L2; speed only)\n    s_and_b32 s43, s2, 7\n    s_bfe_u32 s44, s2, 0x30003\n")
rep("    buffer_load_dwordx4 v[80:83], v1, s[8:11], s39 offen offset:0 nt\n", "; first block: guess table[i] = i, checked against the block table below\n    buffer_load_dwordx4 v[80:83], v1, s[8:11], s39 offen offset:0 nt\n")
rep("    s_cbranch_scc0 L_done\n", "    s_cbranch_scc0 L_none\n")
rep("    s_branch L_stored\n", "    s_branch L_stored\nL_none:\n    s_waitcnt vmcnt(0)\n    s_branch L_done\n")
rep("L_slow0:\n", "; running maximum moved: rescale\nL_slow0:\n")
rep("L_dyn:\n", "; pool item from the ticket table\nL_dyn:\n")
rep("    s_sleep 2\n    s_branch L_first\n", "    s_sleep 2\n    s_branch L_first\n")
rep("L_tick_null:\n", "; last item, no ticket needed: this load keeps the vmcnt pattern and pulls the gather slots into L2\nL_tick_null:\n")
rep("L_done:\n", "; merge the four waves through LDS, publish, gather the head's 32 partials, write 8 outputs per wave\nL_done:\n")
rep("L_epi:\n", "")
rep("L_mchk:\n", "")
rep("L_mfall:\n", "; own maximum was too small a reference: redo with the true maximum\nL_mfall:\n")
cut("    s_branch L_mred\n", "L_service:\n")
rep("L_service:\n    s_load_dwordx2 s[64:65], s[0:1], 40\n", "; service wave: reset slots and ticket counters, build the pool table, wait until every workgroup did\nL_service:\n")
i = s.index("L_service:")
a, b = s[:i], s[i:]
b = b.replace("    s_mov_b32 s66, 16384\n    s_mov_b32 s67, 0x20000\n", "", 1)
b = b.replace("""    s_lshr_b32 s46, s33, 4
    s_lshl_b32 s46, s46, 13
    s_lshl_b32 s43, s32, 10
    s_add_u32 s46, s46, s43
    s_and_b32 s43, s33, 15
    s_lshl_b32 s43, s43, 6
    s_add_u32 s46, s46, s43
""", "", 1)
b = b.replace("    v_mov_b32 v3, 1\n    s_getreg", "    s_getreg", 1)
b = re.sub(r"    s_sleep (\d+)\n", lambda m: "    s_sleep %-42s; poll back-off\n" % m.group(1), b)
s = a + b
cut("    s_waitcnt lgkmcnt(0)\n    s_barrier\n    s_endpgm\n", "L_end:\n")
rep("    s_barrier\n    s_endpgm\nL_end:\n", "    s_barrier\nL_end:\n")
cut("L_end:\n    s_endpgm\n", ".section .rodata")
code = s[:s.index(".section .rodata")]
code = re.sub(r";.*", "", code)
mv = max([int(x) for x in re.findall(r"\bv(\d+)\b", code)] + [int(x) for x in re.findall(r"v\[\d+:(\d+)\]", code)])
ms = max([int(x) for x in re.findall(r"\bs(\d+)\b", code)] + [int(x) for x in re.findall(r"s\[\d+:(\d+)\]", code)])
s = re.sub(r"next_free_vgpr \d+", "next_free_vgpr %d" % (mv + 1), s)
s = re.sub(r"next_free_sgpr \d+", "next_free_sgpr %d" % (ms + 1), s)
s = re.sub(r"accum_offset \d+", "accum_offset %d" % ((mv + 4) // 4 * 4), s)
s = re.sub(r" +\n", "\n", s)
open(sys.argv[2], "w").write(s)
```

```python
import sys
s=open(sys.argv[1]).read()
def rep(a,b,cnt=1):
    global s
    assert s.count(a)==cnt,(a,s.count(a))
    s=s.replace(a,b)
rep("""    v_mul_u32_u24 v115, 132, v18
    v_lshl_add_u32 v115, v19, 5, v115
    v_add_lshl_u32 v115, v115, v21, 2
    v_add_u32 v116, 2112, v115
""","""    v_lshlrev_b32 v115, 1, v19
    v_xor_b32 v115, v115, v20
    v_lshl_add_u32 v115, v18, 3, v115
    v_lshl_add_u32 v115, v115, 2, v21
    v_lshlrev_b32 v115, 4, v115
    v_xor_b32 v116, 64, v115
""")
rep("""    v_mul_u32_u24 v119, 528, v18
    v_lshl_add_u32 v119, v22, 4, v119
""","""    v_and_b32 v119, 3, v18
    v_lshlrev_b32 v119, 2, v119
    v_xor_b32 v119, v119, v22
    v_lshl_add_u32 v119, v18, 5, v119
    v_lshlrev_b32 v119, 4, v119
""")
rep("""    v_lshlrev_b32 v122, 1, v19
    v_lshl_add_u32 v122, v22, 3, v122
""","""    v_lshlrev_b32 v122, 4, v19
    v_lshl_add_u32 v122, v22, 1, v122
""")
rep("""    s_lshl2_add_u32 s43, s43, s34
    s_lshl4_add_u32 s76, s43, s76
""","""    s_lshl4_add_u32 s43, s43, s34
    s_lshl2_add_u32 s76, s43, s76
""")
rep("""    ds_write2_b32 v115, v32, v36 offset0:0 offset1:4
    ds_write2_b32 v115, v33, v37 offset0:8 offset1:12
""","""    ds_write_b128 v115, v[32:35]
    ds_write_b128 v116, v[36:39]
""")
rep("""    ds_write2_b32 v115, v34, v38 offset0:16 offset1:20
    ds_write2_b32 v115, v35, v39 offset0:24 offset1:28
""","""    ds_write_b128 v115, v[40:43] offset:2048
    ds_write_b128 v116, v[44:47] offset:2048
""")
rep("""    ds_write2_b32 v116, v40, v44 offset0:0 offset1:4
    ds_write2_b32 v116, v41, v45 offset0:8 offset1:12
    ds_write2_b32 v116, v42, v46 offset0:16 offset1:20
    ds_write2_b32 v116, v43, v47 offset0:24 offset1:28
""","")
rep("v119 offset:4224","v119 offset:4096"); rep("v119 offset:8448","v119 offset:8192"); rep("v119 offset:12672","v119 offset:12288")
open(sys.argv[2],'w').write(s)
```
